```python
import torch

def _softmax(x, axis=-1):
    return torch.softmax(x, dim=axis)
def _gelu(x):
    return torch.nn.functional.gelu(x, approximate="tanh")
def _silu(x):
    return torch.nn.functional.silu(x)
def _sigmoid(x):
    return torch.sigmoid(x)
def _layernorm(x, axis=-1, eps=1e-5):
    m = x.mean(dim=axis, keepdim=True)
    v = x.var(dim=axis, keepdim=True, unbiased=False)
    return (x - m) / torch.sqrt(v + eps)
def _scatter_add(tgt, idx, src, axis=0):
    return tgt.clone().index_add_(axis, idx, src)
def _segment_sum(src, seg, n):
    out = torch.zeros((n,) + src.shape[1:], dtype=src.dtype)
    return out.index_add_(0, seg, src)
def _pad(x, pw):
    flat = tuple(v for pair in reversed(pw) for v in pair)
    return torch.nn.functional.pad(x, flat)

kernel_name = 'recurrent_scan__grouped_kv_mqa__glu_gated_swiglu__prompt'

def setup_inputs():

    _w = (lambda a: (lambda t: t.to(torch.bfloat16) if t.is_floating_point() else t)(torch.as_tensor(a)))
    def _A_setup():
        B, S, D, H = 1, 2048, 512, 32
        Dh = D // H
        return {
            "x": _w((lambda *s: torch.randn(*s, dtype=torch.bfloat16) * 0.05)(B, S, D)),
            "wq": _w((lambda *s: torch.randn(*s, dtype=torch.bfloat16) * 0.2)(D, H * Dh)),
            "wk": _w((lambda *s: torch.randn(*s, dtype=torch.bfloat16) * 0.2)(D, Dh)),
            "wv": _w((lambda *s: torch.randn(*s, dtype=torch.bfloat16) * 0.2)(D, Dh)),
            "wo": _w((lambda *s: torch.randn(*s, dtype=torch.bfloat16) * 0.2)(H * Dh, D)),
        }
    _A_in = _A_setup()

    def _B_setup():
        B, S, D, F = 1, 2048, 512, 1376
        return {
            "x": _w((lambda *s: torch.randn(*s, dtype=torch.bfloat16) * 0.05)(B, S, D)),
            "w1": _w((lambda *s: torch.randn(*s, dtype=torch.bfloat16) * 0.1)(D, F) * (2.0 / D) ** 0.5),
            "w3": _w((lambda *s: torch.randn(*s, dtype=torch.bfloat16) * 0.1)(D, F) * (2.0 / D) ** 0.5),
            "w2": _w((lambda *s: torch.randn(*s, dtype=torch.bfloat16) * 0.1)(F, D) * (2.0 / F) ** 0.5),
        }
    _B_in = _B_setup()

    return {
        "A_x": _A_in["x"],
        "A_wq": _A_in["wq"],
        "A_wk": _A_in["wk"],
        "A_wv": _A_in["wv"],
        "A_wo": _A_in["wo"],
        "B_x": _B_in["x"],
        "B_w1": _B_in["w1"],
        "B_w3": _B_in["w3"],
        "B_w2": _B_in["w2"],
    }

def reference(A_x, A_wq, A_wk, A_wv, A_wo, B_x, B_w1, B_w3, B_w2):
    def _A_ref(x, wq, wk, wv, wo):
        B, S, D = x.shape
        H = 32
        Dh = D // H
        q = (lambda x, *d: x.permute(*d))((x @ wq).reshape(B, S, H, Dh), 0, 2, 1, 3)
        k = x @ wk
        v = x @ wv
        scores = torch.einsum("bhqd,bkd->bhqk", q, k) * (Dh ** -0.5)
        p = _softmax(scores, axis=-1)
        o = torch.einsum("bhqk,bkd->bhqd", p, v)
        return (lambda x, *d: x.permute(*d))(o, 0, 2, 1, 3).reshape(B, S, H * Dh) @ wo

    def _B_ref(x, w1, w3, w2):
        gate = torch.einsum("bsd,df->bsf", x, w1)
        up = torch.einsum("bsd,df->bsf", x, w3)
        h = _silu(gate) * up
        out = torch.einsum("bsf,fd->bsd", h, w2)
        return out

    x = A_x
    xn = _layernorm(x, axis=-1)
    s = _A_ref(xn, A_wq, A_wk, A_wv, A_wo)
    g = _silu(_B_ref(xn, B_w1, B_w3, B_w2))
    return x + s * g
```

```python
import re

class Asm:
    def __init__(self):
        self.lines = []
    def __call__(self, s, *more):
        for t in (s,)+more:
            for l in str(t).split("\n"):
                l = l.strip()
                if l: self.lines.append(l)
    def label(self, name): self.lines.append(name + ":")
    def cmt(self, s): self.lines.append("; " + s)
    def text(self):
        out = []
        for l in self.lines:
            if l.endswith(":") or l.startswith("."): out.append(l)
            else: out.append("    " + l)
        return "\n".join(out) + "\n"

def vr(a, n=1):
    return f"v{a}" if n == 1 else f"v[{a}:{a+n-1}]"
def sr(a, n=1):
    return f"s{a}" if n == 1 else f"s[{a}:{a+n-1}]"

_REG = re.compile(r"^(-|abs\(|\|)?([vsa])(\d+)\)?\|?$")
_RNG = re.compile(r"^(-|abs\()?([vsa])\[(\d+):(\d+)\]\)?$")
def regs_of(op):
    op = op.strip()
    m = _RNG.match(op)
    if m: return [(m.group(2), i) for i in range(int(m.group(3)), int(m.group(4)) + 1)]
    m = _REG.match(op)
    if m: return [(m.group(2), int(m.group(3)))]
    if op == "vcc": return [("s", "vcc")]
    if op == "exec": return [("s", "exec")]
    if op == "m0": return [("s", "m0")]
    return []

TRANS = ("v_exp_f32", "v_log_f32", "v_rcp_f32", "v_rsq_f32", "v_sqrt_f32", "v_sin_f32", "v_cos_f32", "v_exp_f16", "v_rcp_iflag_f32")
class Ins:
    def __init__(self, line):
        self.line = line
        code = line.split(";")[0].strip()
        parts = code.split(None, 1)
        self.mn = parts[0]
        ops = []
        if len(parts) > 1:
            cur = ""; depth = 0
            for ch in parts[1]:
                if ch in "[(": depth += 1
                if ch in "])": depth -= 1
                if ch == "," and depth == 0: ops.append(cur.strip()); cur = ""
                else: cur += ch
            ops.append(cur.strip())
        self.mods = ""
        if ops:
            t = ops[-1].split(None, 1)
            if len(t) > 1 and not ops[-1].startswith("hwreg"):
                ops[-1] = t[0]; self.mods = t[1]
        self.ops = ops
        mn = self.mn
        self.is_mfma = mn.startswith("v_mfma") or mn.startswith("v_smfmac")
        self.is_valu = mn.startswith("v_") and not self.is_mfma
        self.is_salu = mn.startswith("s_")
        self.is_ds = mn.startswith("ds_")
        self.is_vmem = mn.startswith("buffer_") or mn.startswith("global_")
        self.is_trans = any(mn.startswith(t) for t in TRANS)
        self.is_dot = mn.startswith("v_dot")
        self.is_perml = mn.startswith("v_permlane")
        self.is_dpp = "_dpp" in mn or "row_" in self.mods or "quad_perm" in self.mods
        self.is_sdwa_dst = "_sdwa" in mn and "dst_sel:DWORD" not in self.mods
        self.wr = []; self.rd = []
        R = [regs_of(o) for o in ops]
        flat = lambda L: [x for y in L for x in y]
        if self.is_mfma:
            self.wr = R[0]; self.A = R[1]; self.B = R[2]; self.C = R[3] if len(R) > 3 else []
            self.rd = self.A + self.B + self.C
            if mn.startswith("v_smfmac"): self.rd += R[0]
            self.passes = 8 if "32x32" in mn else 4
        elif self.is_valu:
            if mn.startswith("v_cmp"):
                self.wr = R[0]; self.rd = flat(R[1:])
            elif mn.startswith("v_readfirstlane") or mn.startswith("v_readlane"):
                self.wr = R[0]; self.rd = flat(R[1:])
            elif self.is_perml:
                self.wr = R[0] + R[1]; self.rd = R[0] + R[1]
            elif mn.startswith("v_add_co") or mn.startswith("v_addc_co") or mn.startswith("v_sub_co"):
                self.wr = R[0] + R[1]; self.rd = flat(R[2:])
            else:
                self.wr = R[0]; self.rd = flat(R[1:])
                if mn.startswith("v_fmac") or mn.startswith("v_dot2c") or mn.startswith("v_pk_fmac") or "UNUSED_PRESERVE" in self.mods or mn.startswith("v_writelane"):
                    self.rd += R[0]
                if mn.startswith("v_cndmask") and len(ops) == 3: self.rd.append(("s", "vcc"))
        elif self.is_ds:
            if mn.startswith("ds_read") or "_rtn" in mn or mn.startswith("ds_bpermute") or mn.startswith("ds_swizzle"):
                self.wr = R[0]; self.rd = flat(R[1:])
            else:
                self.rd = flat(R)
        elif self.is_vmem:
            lds = " lds" in (" " + self.mods) or "_lds_" in mn
            self.is_dma = lds
            if "load" in mn and not lds:
                self.wr = R[0]; self.rd = flat(R[1:])
            elif "atomic" in mn and "sc0" in self.mods and mn.startswith("global"):
                self.wr = R[0]; self.rd = flat(R[1:])
            elif "atomic" in mn and "sc0" in self.mods:
                self.wr = R[0]; self.rd = flat(R)
            else:
                self.rd = flat(R)
            if lds: self.rd.append(("s", "m0"))
            self.wide_store = ("store" in mn and ("x4" in mn or "x3" in mn))
            self.store_data = (R[0] if mn.startswith("buffer") else (R[1] if len(R) > 1 else [])) if "store" in mn else []
        elif self.is_salu:
            nowr = ("s_cmp", "s_cbranch", "s_branch", "s_waitcnt", "s_nop", "s_barrier", "s_endpgm", "s_setprio", "s_sleep", "s_bitcmp")
            if any(mn.startswith(x) for x in nowr):
                self.rd = flat(R)
            else:
                self.wr = R[0] if R else []; self.rd = flat(R[1:])
                if "saveexec" in mn: self.wr += [("s", "exec")]
        self.ws = 1
        if mn == "s_nop": self.ws = int(ops[0], 0) + 1

def check_seq(seq, errs, tag=""):
    n = len(seq)
    for i, c in enumerate(seq):
        dist = 0
        for j in range(i - 1, max(-1, i - 40), -1):
            p = seq[j]
            need = 0; why = ""
            W = set(p.wr); Rd = set(c.rd); Wc = set(c.wr)
            vW = {x for x in W if x[0] in "va"}
            sW = {x for x in W if x[0] == "s"}
            def upd(nn, w):
                nonlocal need, why
                if nn > need: need = nn; why = w
            if p.is_valu and c.is_mfma and vW & Rd: upd(2, "VALU->MFMA operand")
            if p.is_mfma:
                lat = 12 if p.passes == 8 else 8
                if (c.is_valu or c.is_ds or c.is_vmem) and (vW & (Rd | Wc)): upd(lat, "MFMA D -> VALU/mem")
                if c.is_mfma:
                    if vW & (set(c.A) | set(c.B)): upd(lat, "MFMA D -> MFMA A/B")
                    if vW & set(c.C) and set(c.C) != vW: upd(lat - 2, "MFMA D -> MFMA C partial")
                    if vW & set(c.C) and set(c.C) == vW and c.passes != p.passes: upd(lat - 2, "MFMA D -> MFMA C different shape")
                    if vW & Wc and not (set(c.C) == vW): upd(lat, "MFMA D -> MFMA D WAW (conservative)")
                if c.is_valu and set(p.C) & Wc: upd(7 if p.passes == 8 else 3, "MFMA C read -> VALU write (WAR)")
            if p.is_trans and c.is_valu and not c.is_trans and vW & Rd: upd(1, "trans -> VALU")
            if p.is_trans and c.is_trans and vW & Rd: upd(1, "trans -> trans (conservative)")
            if p.is_valu and c.is_perml and vW & Rd: upd(2, "VALU -> permlane")
            if p.is_valu and c.is_dpp and vW & Rd: upd(2, "VALU -> DPP")
            if p.is_valu and c.is_valu and (c.mn.startswith("v_readfirstlane") or c.mn.startswith("v_readlane")) and vW & Rd: upd(1, "VALU -> readlane")
            if p.is_valu and sW:
                if c.is_valu and sW & Rd: upd(2, "VALU sgpr -> VALU const")
                if c.is_vmem and sW & Rd: upd(5, "VALU sgpr -> VMEM")
                if c.is_salu and sW & Rd: upd(1, "VALU sgpr -> SALU (pad)")
            if p.is_salu and ("s", "m0") in W and c.is_vmem and getattr(c, "is_dma", False): upd(1, "m0 -> DMA")
            if p.is_vmem and getattr(p, "wide_store", False) and c.is_valu and set(p.store_data) & Wc: upd(2, "wide store data WAR")
            if p.is_dot and c.is_valu and vW & Rd and c.mn != p.mn: upd(3, "dot -> other")
            if p.is_dot and (c.is_ds or c.is_vmem) and vW & Rd: upd(3, "dot -> mem")
            if p.is_dot and c.is_dot and vW & Rd and c.mn == p.mn:
                srcAB = set(regs_of(c.ops[1])) | set(regs_of(c.ops[2]))
                if vW & srcAB: upd(3, "dot -> dot A/B")
            if p.is_valu and p.is_sdwa_dst and c.is_valu and vW & (Rd | Wc): upd(1, "sdwa dst -> VALU")
            if need > dist:
                errs.append(f"{tag}HAZARD {why}: need {need} have {dist}\n    P: {p.line}\n    C: {c.line}")
            dist += p.ws
            if dist >= 13: break

def check(lines):
    errs = []
    ins = []; labels = {}
    for l in lines:
        if l.startswith(";"): continue
        if l.endswith(":"):
            labels[l[:-1]] = len(ins); continue
        if l.startswith("."): continue
        ins.append(Ins(l))
    seg = []
    for k, x in enumerate(ins):
        seg.append(x)
        if x.mn in ("s_branch", "s_endpgm"):
            check_seq(seg, errs); seg = []
    check_seq(seg, errs)
    for k, x in enumerate(ins):
        if x.mn.startswith("s_cbranch") or x.mn == "s_branch":
            t = labels.get(x.ops[0])
            if t is None: continue
            pre = ins[max(0, k - 20):k + 1]
            post = ins[t:t + 20]
            e2 = []
            check_seq(pre + post, e2, tag=f"[edge {x.ops[0]}] ")
            e_pre = []; check_seq(pre, e_pre, tag=f"[edge {x.ops[0]}] ")
            e_post = []; check_seq(post, e_post, tag=f"[edge {x.ops[0]}] ")
            for e in e2:
                if e not in e_pre and e not in e_post: errs.append(e)
    return errs
```

```python
import sys
from common import *
import k1
def build(kernels, path):
    hdr = open("recurrent_scan__grouped_kv_mqa__glu_gated_swiglu__prompt.s.ref").read().split("\n")
    head = [l for l in hdr if l.startswith(";") and "@launch" not in l and "Override launch" not in l and "grid=ceil" not in l]
    lead = []
    for l in hdr:
        if not l.startswith(";"): break
        if "@launch" in l or "Override launch" in l or "grid=ceil" in l: continue
        lead.append(l)
    body = Asm(); descs = []; launches = []
    for g in kernels:
        name, nv, lds, block = g(body)
        descs.append(descriptor(name, nv))
        launches.append(f"; @launch kernel={name} grid=(256,1,1) block=({block},1,1) lds={lds}")
    errs = check(body.lines)
    for e in errs: print(e)
    print(f"hazard check: {len(errs)} problems; {sum(1 for l in body.lines if not l.startswith(';') and not l.endswith(':') and not l.startswith('.'))} instructions")
    out = "\n".join(lead + launches) + "\n"
    out += '.amdgcn_target "amdgcn-amd-amdhsa--gfx950"\n.text\n'
    for l in launches:
        n = l.split("kernel=")[1].split()[0]
        out += f".globl {n}\n"
    out += body.text()
    out += '.section .rodata,"a"\n'
    for d in descs: out += ".p2align 6\n" + d
    open(path, "w").write(out)
    return errs
if __name__ == "__main__":
    build([k1.gen_k1], "out_k1.s")
```

```python
from asmlib import *

XN_OFF = 0x000000
QF_OFF = 0x200000
KV_OFF = 0x400000
HF_OFF = 0x500000
NFT = 88
OF_OFF = 0xB00000
WS_SIZE = 0xE00000
XPITCH = 1040
QSCALE = 0.25 * 1.4426950408889634

def f2u(x):
    import struct
    return struct.unpack("<I", struct.pack("<f", x))[0]

P_X, P_WQ, P_WK, P_WV, P_WO, P_BX, P_W1, P_W3, P_W2, P_OUT, P_DBG, P_WS = 16, 18, 20, 22, 24, 26, 28, 30, 32, 34, 36, 38

def prologue(a, name, nwg=256):
    a(f".p2align 8")
    a(f".type {name},@function")
    a.label(name)
    a(f"s_cmp_ge_u32 s2, {nwg}")
    a(f"s_cbranch_scc1 {name}_exit")
    a("s_load_dwordx16 s[16:31], s[0:1], 0")
    a("s_load_dwordx8 s[32:39], s[0:1], 64")
    a("s_and_b32 s4, s2, 7")
    a("s_lshr_b32 s5, s2, 3")
    a("s_and_b32 s5, s5, 3")
    a("s_lshr_b32 s6, s2, 5          ; member j")
    a("s_lshl_b32 s7, s4, 2")
    a("s_add_u32 s7, s7, s5          ; cluster c")
    a("v_lshrrev_b32 v1, 6, v0")
    a("v_and_b32 v0, 63, v0          ; lane")
    a("v_readfirstlane_b32 s8, v1")
    a("v_lshlrev_b32 v1, 4, v0       ; lane*16")
    a("s_waitcnt lgkmcnt(0)")

def srd(a, d, p, size):
    a(f"s_mov_b32 s{d}, s{p}")
    a(f"s_mov_b32 s{d+1}, s{p+1}")
    a(f"s_mov_b32 s{d+2}, {size}")
    a(f"s_mov_b32 s{d+3}, 0x20000")

def descriptor(name, nvgpr, nsgpr=96):
    acc = (nvgpr + 3) // 4 * 4
    return f""".amdhsa_kernel {name}
  .amdhsa_next_free_vgpr {nvgpr}
  .amdhsa_next_free_sgpr {nsgpr}
  .amdhsa_accum_offset {acc}
  .amdhsa_group_segment_fixed_size 0
  .amdhsa_kernarg_size 96
  .amdhsa_user_sgpr_count 2
  .amdhsa_user_sgpr_kernarg_segment_ptr 1
  .amdhsa_system_sgpr_workgroup_id_x 1
  .amdhsa_float_denorm_mode_32 {__import__('os').environ.get('DENORM','3')}
.end_amdhsa_kernel
"""

def mfma(a, d, A, B, c=None):
    cs = f"v[{d}:{d+15}]" if c is None else (c if isinstance(c, str) else f"v[{c}:{c+15}]")
    a(f"v_mfma_f32_32x32x16_bf16 v[{d}:{d+15}], v[{A}:{A+3}], v[{B}:{B+3}], {cs}")

PROF = False
PROF_OFF = 0xD00000
def stamp(a, i):
    import common
    if not common.PROF: return
    a("s_memtime s[78:79]")
    a("s_waitcnt lgkmcnt(0)")
    a(f"s_mov_b32 s{80+i}, s78")
def stamp_rt(a, i):
    import common
    if not common.PROF: return
    a("s_memrealtime s[78:79]")
    a("s_waitcnt lgkmcnt(0)")
    a(f"s_mov_b32 s{80+i}, s78")
def prof_flush(a, kidx, SWS, n=12):
    import common
    if not common.PROF: return
    a("s_lshl_b32 s78, s2, 4")
    a("s_add_u32 s78, s78, s8")
    a("s_lshl_b32 s78, s78, 6")
    a(f"s_add_u32 s78, s78, {PROF_OFF + kidx*0x40000}")
    a("s_mov_b64 exec, 1")
    a("v_mov_b32 v160, 0")
    for i in range(n):
        a(f"v_mov_b32 v161, s{80+i}")
        a(f"buffer_store_dword v161, v160, s[{SWS}:{SWS+3}], s78 offen offset:{4*i}")
    a("s_mov_b64 exec, -1")
```

```python
from common import *

XR = 0
WQ = 66560
WKV = WQ + 65536
ST = WKV + 16384
K1_LDS = ST + 4096
QX = WQ
RED = WQ + 16384

def gen_k1(a):
    name = "k1_kernel"
    prologue(a, name)
    SX, SWQ, SKV, SWS = 40, 44, 48, 52
    srd(a, SX, P_X, 2048 * 1024)
    srd(a, SWQ, P_WQ, 512 * 1024)
    srd(a, SWS, P_WS, WS_SIZE)
    a("s_bitcmp1_b32 s6, 1")
    a(f"s_cselect_b32 s{SKV}, s{P_WV}, s{P_WK}")
    a(f"s_cselect_b32 s{SKV+1}, s{P_WV+1}, s{P_WK+1}")
    a(f"s_mov_b32 s{SKV+2}, 16384")
    a(f"s_mov_b32 s{SKV+3}, 0x20000")
    a("v_and_b32 v2, 31, v0            ; n")
    a("v_lshrrev_b32 v3, 5, v0         ; h")
    a("v_lshrrev_b32 v4, 3, v0")
    a("v_lshrrev_b32 v5, 1, v4")
    a("v_and_b32 v5, 1, v5")
    a("v_lshlrev_b32 v5, 2, v5")
    a("v_and_b32 v6, 7, v0")
    a("v_xor_b32 v5, v5, v6")
    a("v_lshlrev_b32 v5, 4, v5")
    a("v_lshl_add_u32 v4, v4, 10, v5")
    a("s_cmp_ge_u32 s8, 8")
    a(f"s_cbranch_scc1 {name}_gdma")
    a("s_lshl_b32 s64, s7, 6")
    a("s_lshl_b32 s65, s8, 3")
    a("s_add_u32 s64, s64, s65")
    a("s_lshl_b32 s64, s64, 10")
    a(f"s_mul_i32 s65, s8, {8*XPITCH}")
    for i in range(8):
        a("s_mov_b32 m0, s65")
        a(f"s_add_u32 s65, s65, {XPITCH}")
        a(f"buffer_load_dwordx4 v1, s[{SX}:{SX+3}], s64 offen lds")
        a("s_add_u32 s64, s64, 1024")
    a("s_lshl_b32 s64, s8, 15          ; 4w*8192")
    a("s_lshl_b32 s66, s6, 7")
    a("s_add_u32 s64, s64, s66")
    a("s_lshl_b32 s65, s8, 12")
    a(f"s_add_u32 s65, s65, {WQ}")
    for i in range(4):
        a("s_mov_b32 m0, s65")
        a("s_add_u32 s65, s65, 1024")
        a(f"buffer_load_dwordx4 v4, s[{SWQ}:{SWQ+3}], s64 offen lds")
        a("s_add_u32 s64, s64, 8192")
    a("s_waitcnt vmcnt(4)")
    a("s_barrier                        ; B1")
    X = 16
    a("s_and_b32 s9, s8, 1             ; rt")
    a("s_lshr_b32 s10, s8, 1           ; kq")
    a(f"v_mul_u32_u24 v7, {XPITCH}, v2")
    a("v_lshl_add_u32 v7, v3, 4, v7    ; n*pitch + h*16")
    a(f"s_mul_i32 s64, s9, {32*XPITCH}")
    a("s_lshl_b32 s65, s10, 8")
    a("s_add_u32 s65, s65, s64")
    a("v_add_u32 v8, s65, v7")
    for s in range(8):
        a(f"ds_read_b128 v[{X+4*s}:{X+4*s+3}], v8 offset:{s*32}")
    a("v_mov_b32 v9, 0x3f803f80")
    for r in range(10, 14): a(f"v_mov_b32 v{r}, 0")
    for s in range(8):
        a(f"s_waitcnt lgkmcnt({7-s})")
        for q in range(4):
            r = X + 4 * s + q
            a(f"v_dot2_f32_bf16 v{10+(q&1)}, v{r}, v9, v{10+(q&1)}")
            a(f"v_dot2_f32_bf16 v{12+(q&1)}, v{r}, v{r}, v{12+(q&1)}")
    a("s_lshl_b32 s64, s9, 11")
    a("s_lshl_b32 s65, s10, 9")
    a("s_add_u32 s64, s64, s65")
    a(f"s_add_u32 s64, s64, {ST}")
    a("v_lshlrev_b32 v14, 3, v0")
    a("v_add_u32 v14, s64, v14")
    a("v_add_f32 v10, v10, v11")
    a("v_add_f32 v11, v12, v13")
    a("ds_write_b64 v14, v[10:11]")
    a("s_waitcnt lgkmcnt(0)")
    a("s_barrier                        ; B2")
    a("s_lshl_b32 s64, s9, 11")
    a(f"s_add_u32 s64, s64, {ST}")
    a("v_lshlrev_b32 v14, 3, v2")
    a("v_add_u32 v14, s64, v14")
    for q in range(8):
        a(f"ds_read_b64 v[{48+2*q}:{49+2*q}], v14 offset:{q*256}")
    a("s_waitcnt lgkmcnt(0)")
    for step in (8, 4, 2):
        for q in range(0, step, 2):
            a(f"v_add_f32 v{48+q}, v{48+q}, v{48+q+step}")
            a(f"v_add_f32 v{49+q}, v{49+q}, v{49+q+step}")
    a(f"v_mul_f32 v48, {hex(f2u(1/512))}, v48      ; mean")
    a(f"v_mul_f32 v49, {hex(f2u(1/512))}, v49      ; E[x^2]")
    a("v_fma_f32 v49, -v48, v48, v49")
    a("v_max_f32 v49, 0, v49")
    a(f"v_add_f32 v49, {hex(f2u(1e-5))}, v49")
    a("v_rsq_f32 v49, v49               ; r")
    a("s_nop 0")
    a("v_mul_f32 v48, v48, v49")
    a("v_sub_f32 v48, 0, v48            ; b = -mean*r")
    a("v_mov_b32 v15, 0xffff0000")
    for r in range(32):
        x = X + r
        t0, t1 = 50 + 2 * (r & 1), 51 + 2 * (r & 1)
        a(f"v_lshlrev_b32 v{t0}, 16, v{x}")
        a(f"v_and_b32 v{t1}, v15, v{x}")
        a(f"v_fma_f32 v{t0}, v{t0}, v49, v48")
        a(f"v_fma_f32 v{t1}, v{t1}, v49, v48")
        a(f"v_cvt_pk_bf16_f32 v{x}, v{t0}, v{t1}")
        if r % 4 == 3:
            s = r // 4
            a(f"ds_write_b128 v8, v[{X+4*s}:{X+4*s+3}] offset:{s*32}")
    a("s_waitcnt vmcnt(0) lgkmcnt(0)")
    a("s_barrier                        ; B3")
    a("s_lshl_b32 s64, s6, 3")
    a("s_add_u32 s64, s64, s8")
    a(f"s_mul_i32 s65, s64, {XPITCH}")
    a("v_add_u32 v14, s65, v1")
    a("ds_read_b128 v[48:51], v14")
    a("s_lshl_b32 s65, s7, 6")
    a("s_add_u32 s64, s64, s65")
    a("s_lshl_b32 s67, s64, 10")
    a("s_lshr_b32 s11, s8, 2           ; ft")
    a("s_bfe_u32 s12, s8, 0x10001")
    a("v_bfe_u32 v20, v0, 2, 2          ; r")
    a("v_and_b32 v21, 3, v0            ; c")
    a("v_bfe_u32 v22, v0, 4, 1          ; g&1")
    a("v_lshlrev_b32 v23, 1, v22")
    a("v_lshrrev_b32 v24, 1, v21")
    a("v_add_u32 v23, v23, v24         ; 2*(g&1)+(c>>1)")
    a("s_lshl_b32 s64, s11, 2")
    a("v_add_u32 v23, s64, v23         ; + 4ft")
    a("v_bfe_u32 v24, v0, 3, 1          ; (r>>1)&1")
    a("v_lshlrev_b32 v24, 2, v24")
    a("v_xor_b32 v23, v23, v24")
    a("v_lshlrev_b32 v23, 4, v23")
    a("v_and_b32 v24, 1, v21")
    a("v_lshl_add_u32 v23, v24, 3, v23")
    a("v_lshl_add_u32 v23, v20, 7, v23")
    a("v_lshl_add_u32 v23, v3, 10, v23")
    a("s_lshl_b32 s64, s12, 15")
    a(f"s_add_u32 s64, s64, {WQ}")
    a("v_add_u32 v23, s64, v23          ; A addr")
    a(f"s_mul_i32 s64, s9, {32*XPITCH}")
    a("s_lshl_b32 s65, s12, 9")
    a("s_add_u32 s64, s64, s65")
    a("v_add_u32 v24, s64, v7           ; B addr")
    a("s_waitcnt lgkmcnt(0)")
    a(f"buffer_store_dwordx4 v[48:51], v1, s[{SWS}:{SWS+3}], s67 offen")
    ACC = 64; AB = [80, 84, 88]; BB = [92, 96, 100]
    def ld(s):
        A = AB[s % 3]; B = BB[s % 3]
        a(f"ds_read_b64_tr_b16 v[{A}:{A+1}], v23 offset:{s*2048}")
        a(f"ds_read_b64_tr_b16 v[{A+2}:{A+3}], v23 offset:{s*2048+512}")
        a(f"ds_read_b128 v[{B}:{B+3}], v24 offset:{s*32}")
    ld(0); ld(1)
    for s in range(16):
        if s + 2 < 16:
            ld(s + 2); a("s_waitcnt lgkmcnt(6)")
        elif s + 1 < 16: a("s_waitcnt lgkmcnt(3)")
        else: a("s_waitcnt lgkmcnt(0)")
        mfma(a, ACC, AB[s % 3], BB[s % 3], "0" if s == 0 else None)
    a("s_barrier                        ; B4")
    a("s_lshl_b32 s64, s8, 11")
    a(f"s_add_u32 s64, s64, {QX}")
    a("v_add_u32 v14, s64, v1")
    a("s_xor_b32 s65, s8, 2")
    a("s_lshl_b32 s65, s65, 11")
    a(f"s_add_u32 s65, s65, {QX}")
    a("v_add_u32 v15, s65, v1")
    a("s_nop 7")
    a("s_cmp_eq_u32 s12, 0")
    a(f"s_cbranch_scc0 {name}_kh1")
    a(f"ds_write_b128 v14, v[{ACC+8}:{ACC+11}]")
    a(f"ds_write_b128 v14, v[{ACC+12}:{ACC+15}] offset:1024")
    for r in range(8): a(f"v_mov_b32 v{48+r}, v{ACC+r}")
    a(f"s_branch {name}_khj")
    a.label(f"{name}_kh1")
    a(f"ds_write_b128 v14, v[{ACC}:{ACC+3}]")
    a(f"ds_write_b128 v14, v[{ACC+4}:{ACC+7}] offset:1024")
    for r in range(8): a(f"v_mov_b32 v{48+r}, v{ACC+8+r}")
    a.label(f"{name}_khj")
    a("s_waitcnt lgkmcnt(0)")
    a("s_barrier                        ; B5")
    a("ds_read_b128 v[56:59], v15")
    a("ds_read_b128 v[60:63], v15 offset:1024")
    a(f"s_mov_b32 s64, {hex(f2u(QSCALE))}")
    a("s_lshl_b32 s65, s7, 1")
    a("s_add_u32 s65, s65, s9")
    a("s_lshl_b32 s65, s65, 5")
    a("s_lshl_b32 s66, s6, 2")
    a("s_add_u32 s65, s65, s66")
    a("s_lshr_b32 s66, s8, 1")
    a("s_add_u32 s65, s65, s66")
    a("s_lshl_b32 s65, s65, 10")
    a(f"s_add_u32 s65, s65, {QF_OFF}")
    a("s_waitcnt lgkmcnt(0)")
    for r in range(8):
        a(f"v_add_f32 v{48+r}, v{48+r}, v{56+r}")
    for r in range(8):
        a(f"v_mul_f32 v{48+r}, s64, v{48+r}")
    for r in range(4):
        a(f"v_cvt_pk_bf16_f32 v{56+r}, v{48+2*r}, v{49+2*r}")
    a(f"buffer_store_dwordx4 v[56:59], v1, s[{SWS}:{SWS+3}], s65 offen")
    a("s_endpgm")
    a.label(f"{name}_gdma")
    a("s_sub_u32 s9, s8, 8              ; g")
    a("s_lshl_b32 s64, s9, 16           ; 8g*8192")
    a("s_add_u32 s64, s64, 0x40000      ; +32*8192")
    a("s_lshl_b32 s66, s6, 7")
    a("s_add_u32 s64, s64, s66")
    a("s_lshl_b32 s65, s9, 13")
    a(f"s_add_u32 s65, s65, {WQ + 32*1024}")
    for i in range(8):
        a("s_mov_b32 m0, s65")
        a("s_add_u32 s65, s65, 1024")
        a(f"buffer_load_dwordx4 v4, s[{SWQ}:{SWQ+3}], s64 offen lds")
        a("s_add_u32 s64, s64, 8192")
    a("s_cmp_ge_u32 s6, 4")
    a(f"s_cbranch_scc1 {name}_gnokv")
    a("s_lshl_b32 s64, s9, 12")
    a(f"s_add_u32 s65, s64, {WKV}")
    a("s_mov_b32 m0, s65")
    a("s_nop 0")
    for i in range(4):
        a(f"buffer_load_dwordx4 v1, s[{SKV}:{SKV+3}], s64 offen offset:{i*1024} lds")
    a.label(f"{name}_gnokv")
    a("s_barrier                        ; B1")
    a("s_barrier                        ; B2")
    a("s_waitcnt vmcnt(0)")
    a("s_barrier                        ; B3")
    a("s_cmp_ge_u32 s6, 4")
    a(f"s_cbranch_scc1 {name}_gskip")
    a("v_bfe_u32 v20, v0, 2, 2          ; r")
    a("v_and_b32 v21, 3, v0            ; c")
    a("v_lshlrev_b32 v23, 8, v3")
    a("v_lshl_add_u32 v23, v20, 5, v23")
    a("v_lshl_add_u32 v23, v21, 3, v23")
    a("s_lshl_b32 s64, s9, 12")
    a(f"s_add_u32 s64, s64, {WKV}")
    a("v_add_u32 v23, s64, v23")
    a("s_and_b32 s10, s6, 1             ; rt")
    a(f"v_mul_u32_u24 v7, {XPITCH}, v2")
    a("v_lshl_add_u32 v7, v3, 4, v7")
    a(f"s_mul_i32 s64, s10, {32*XPITCH}")
    a("s_lshl_b32 s65, s9, 8")
    a("s_add_u32 s64, s64, s65")
    a("v_add_u32 v24, s64, v7")
    for s in range(8):
        A = 80 + 8 * s
        a(f"ds_read_b64_tr_b16 v[{A}:{A+1}], v23 offset:{s*512}")
        a(f"ds_read_b64_tr_b16 v[{A+2}:{A+3}], v23 offset:{s*512+128}")
        a(f"ds_read_b128 v[{A+4}:{A+7}], v24 offset:{s*32}")
        if s == 3: a("s_waitcnt lgkmcnt(0)")
    a("s_bitcmp1_b32 s6, 1")
    a(f"s_cbranch_scc1 {name}_gv")
    a("s_waitcnt lgkmcnt(0)")
    for s in range(8):
        A = 80 + 8 * s
        mfma(a, ACC, A, A + 4, "0" if s == 0 else None)
    a(f"s_branch {name}_gj")
    a.label(f"{name}_gv")
    a("s_waitcnt lgkmcnt(0)")
    for s in range(8):
        A = 80 + 8 * s
        mfma(a, ACC, A + 4, A, "0" if s == 0 else None)
    a.label(f"{name}_gj")
    a("s_barrier                        ; B4")
    a("s_lshl_b32 s64, s9, 12")
    a(f"s_add_u32 s64, s64, {RED}")
    a("v_add_u32 v14, s64, v1")
    a("s_nop 7")
    for q in range(4):
        a(f"ds_write_b128 v14, v[{ACC+4*q}:{ACC+4*q+3}] offset:{q*1024}")
    a("s_waitcnt lgkmcnt(0)")
    a("s_barrier                        ; B5")
    a("s_cmp_eq_u32 s9, 0")
    a(f"s_cbranch_scc0 {name}_exit")
    a(f"v_add_u32 v14, {RED}, v1")
    for g in range(1, 4):
        for q in range(4):
            a(f"ds_read_b128 v[{80+16*(g-1)+4*q}:{80+16*(g-1)+4*q+3}], v14 offset:{g*4096+q*1024}")
    a("s_waitcnt lgkmcnt(0)")
    for r in range(16):
        a(f"v_add_f32 v{ACC+r}, v{ACC+r}, v{80+r}")
        a(f"v_add_f32 v{96+r}, v{96+r}, v{112+r}")
    for r in range(16):
        a(f"v_add_f32 v{ACC+r}, v{ACC+r}, v{96+r}")
    for r in range(8):
        a(f"v_cvt_pk_bf16_f32 v{48+r}, v{ACC+2*r}, v{ACC+2*r+1}")
    a("s_lshl_b32 s64, s7, 1")
    a("s_add_u32 s64, s64, s10")
    a("s_lshl_b32 s64, s64, 11")
    a(f"s_add_u32 s64, s64, {KV_OFF}")
    a("s_bitcmp1_b32 s6, 1")
    a(f"s_cbranch_scc1 {name}_gvst")
    a(f"buffer_store_dwordx4 v[48:51], v1, s[{SWS}:{SWS+3}], s64 offen")
    a("s_endpgm")
    a.label(f"{name}_gvst")
    a("v_lshlrev_b32 v14, 8, v3")
    a("v_lshl_add_u32 v14, v2, 4, v14")
    a("v_mov_b32 v15, 0x40000000")
    a("v_cmp_gt_u32 vcc, 16, v2")
    a("s_add_u32 s64, s64, 1024")
    a("s_nop 1")
    a("v_cndmask_b32 v14, v15, v14, vcc")
    a(f"buffer_store_dwordx4 v[48:51], v14, s[{SWS}:{SWS+3}], s64 offen")
    a(f"buffer_store_dwordx4 v[52:55], v14, s[{SWS}:{SWS+3}], s64 offen offset:512")
    a("s_endpgm")
    a.label(f"{name}_gskip")
    a("s_barrier                        ; B4")
    a("s_barrier                        ; B5")
    a.label(f"{name}_exit")
    a("s_endpgm")
    return name, 152, K1_LDS, 768
```

```python
from common import *

XR = 0
KVR = 66560
GS = KVR + 32768
GSZ = 12800
CNT = GS + 4 * GSZ
K2_LDS = CNT + 64
MOFF = float(__import__('os').environ.get('MOFF','80'))

Q = 4; VK = 8; VV = 9; VCA = 10; VONE = 11; VCNT = 12
S = [16, 32]; P = 48; O = 56; NM = 72; KB = [88, 92]; VB = [96, 104]
SWS, SKV, SW1, SW3 = 40, 44, 48, 52
EXM = 56

def attn_unit(a, t, sync_hooks=True):
    import os
    if os.environ.get("NOSYNC"): sync_hooks = False
    a0 = a
    if os.environ.get("NODS"):
        def a(*x):
            for y in x:
                if not ("ds_read_b128" in y or "exec" in y): a0(y)
        a.label = a0.label
    if os.environ.get("NOMFMA"):
        a1 = a
        def a(*x):
            for y in x:
                if not ("v_mfma" in y): a1(y)
        a.label = a0.label
    if os.environ.get("NOEXP"):
        a2 = a
        def a(*x):
            for y in x:
                if not ("v_exp" in y): a2(y)
        a.label = a0.label
    p = t & 1
    Sc, Sn = S[p], S[1 - p]
    E = [f"v_exp_f32 v{Sc+i}, v{Sc+i}" for i in range(16)]
    C = [f"v_cvt_pk_bf16_f32 v{P+i}, v{Sc+2*i}, v{Sc+2*i+1}" for i in range(8)]
    Vprev = VB[(t - 1) & 1]; Vc = VB[t & 1]; Vn = VB[(t + 1) & 1]
    PRIO = os.environ.get("PRIO")
    if PRIO == "1": a(f"s_setprio {3 - (t % 4)}")
    if PRIO == "2": a(f"s_setprio {1 - (t % 2)}")
    a("s_waitcnt lgkmcnt(0)")
    if sync_hooks and t % 4 == 0:
        a("s_waitcnt vmcnt(1)")
        a("s_mov_b64 exec, 1")
        a(f"ds_add_u32 v{VCA}, v{VONE}")
        a("s_mov_b64 exec, -1")
    a(E[0])
    if sync_hooks and t % 4 == 2:
        a(f"v_readfirstlane_b32 s60, v{VCNT}")
    mfma(a, O, Vprev + 4, P + 4)
    a(E[1])
    if sync_hooks and t % 4 == 2:
        lbl = f"k2_ok{t}"
        a("s_cmp_ge_u32 s60, s61")
        a(f"s_cbranch_scc1 {lbl}")
        a.label(f"k2_spin{t}")
        if os.environ.get("SLEEP"): a("s_sleep 2")
        a(f"ds_read_b32 v{VCNT}, v{VCA}")
        a("s_waitcnt lgkmcnt(0)")
        a(f"v_readfirstlane_b32 s60, v{VCNT}")
        a("s_nop 0")
        a("s_cmp_ge_u32 s60, s61")
        a(f"s_cbranch_scc0 k2_spin{t}")
        a.label(lbl)
        a("s_add_u32 s61, s61, 8")
        slot = ((t // 4) + 3) % 4
        a(f"s_add_u32 m0, s63, {slot*8192}")
        a("s_add_u32 s62, s62, 8192")
        a(f"buffer_load_dwordx4 v1, s[{SKV}:{SKV+3}], s62 offen lds")
    for i in range(2, 5): a(E[i])
    mfma(a, Sn, KB[(t + 1) & 1], Q, NM)
    import os
    NOEXEC = os.environ.get("NOEXEC")
    if not NOEXEC: a(f"s_mov_b64 exec, s[{EXM}:{EXM+1}]")
    vo = ((t + 1) % 16) * 2048
    a(f"ds_read_b128 v[{Vn}:{Vn+3}], v{VV} offset:{vo}")
    a(f"ds_read_b128 v[{Vn+4}:{Vn+7}], v{VV} offset:{vo+512}")
    if not NOEXEC: a("s_mov_b64 exec, -1")
    ko = ((t + 2) % 16) * 2048
    Kl = KB[t & 1]
    a(f"ds_read_b128 v[{Kl}:{Kl+3}], v{VK} offset:{ko}")
    if sync_hooks and t % 4 == 1:
        a(f"ds_read_b32 v{VCNT}, v{VCA}")
    for i in range(5, 10): a(E[i])
    for i in range(0, 4): a(C[i])
    a(E[10]); a(E[11])
    mfma(a, O, Vc, P)
    for i in range(12, 16): a(E[i])
    for i in range(4, 8): a(C[i])

def gen_a_wave(a, name):
    a("s_and_b32 s9, s8, 1             ; rt")
    a("s_lshr_b32 s10, s8, 1           ; hl")
    a("s_lshl_b32 s64, s7, 1")
    a("s_add_u32 s64, s64, s9")
    a("s_lshl_b32 s64, s64, 5")
    a("s_lshl_b32 s65, s6, 2")
    a("s_add_u32 s64, s64, s65")
    a("s_add_u32 s64, s64, s10")
    a("s_lshl_b32 s11, s64, 10")
    a(f"s_add_u32 s64, s11, {QF_OFF}")
    a(f"buffer_load_dwordx4 v[{Q}:{Q+3}], v1, s[{SWS}:{SWS+3}], s64 offen")
    a("s_lshl_b32 s62, s8, 10")
    a(f"s_add_u32 s63, s62, {KVR}")
    for c in range(3):
        a(f"s_add_u32 m0, s63, {c*8192}")
        if c: a("s_add_u32 s62, s62, 8192")
        else: a("s_nop 0")
        a(f"buffer_load_dwordx4 v1, s[{SKV}:{SKV+3}], s62 offen lds")
    a(f"v_add_u32 v{VK}, {KVR}, v1")
    a("v_and_b32 v13, 15, v0")
    a("v_lshlrev_b32 v13, 4, v13")
    a("v_lshl_add_u32 v13, v3, 8, v13")
    a(f"v_add_u32 v{VV}, {KVR+1024}, v13")
    a(f"v_mov_b32 v{VCA}, {CNT}")
    a(f"v_mov_b32 v{VONE}, 1")
    a(f"s_mov_b32 s{EXM}, 0xffff")
    a(f"s_mov_b32 s{EXM+1}, 0xffff")
    a("s_mov_b32 s61, 8")
    import os
    if os.environ.get("ZROWS"):
        a("v_and_b32 v13, 27, v0")
        a("v_cmp_eq_u32 vcc, 16, v13")
        a("v_mov_b32 v14, 0x3f803f80")
        a("s_nop 0")
        a("v_cndmask_b32 v13, 0, v14, vcc")
        for r in range(16): a(f"v_mov_b32 v{VB[0]+r}, v13")
    else:
        for r in range(16): a(f"v_mov_b32 v{VB[0]+r}, 0x3f803f80")
    for r in range(16): a(f"v_mov_b32 v{O+r}, 0")
    for r in range(8): a(f"v_mov_b32 v{P+r}, 0")
    a("s_cmp_eq_u32 s8, 0")
    a(f"s_cbranch_scc0 {name}_nocnt")
    a("v_mov_b32 v13, 0")
    a(f"ds_write_b32 v{VCA}, v13")
    a.label(f"{name}_nocnt")
    stamp(a, 1)
    a("s_waitcnt vmcnt(1) lgkmcnt(0)")
    a("s_barrier")
    stamp(a, 2)
    a(f"ds_read_b128 v[{KB[0]}:{KB[0]+3}], v{VK}")
    a(f"ds_read_b128 v[{KB[1]}:{KB[1]+3}], v{VK} offset:2048")
    a(f"s_mov_b64 exec, s[{EXM}:{EXM+1}]")
    a(f"ds_read_b128 v[{VB[0]}:{VB[0]+3}], v{VV}")
    a(f"ds_read_b128 v[{VB[0]+4}:{VB[0]+7}], v{VV} offset:512")
    a("s_mov_b64 exec, -1")
    a("s_waitcnt lgkmcnt(2)")
    mfma(a, S[0], KB[0], Q, "0")
    mfma(a, S[1], KB[1], Q, "0")
    a("s_nop 7"); a("s_nop 3")
    a(f"v_max3_f32 v13, v{S[0]}, v{S[0]+1}, v{S[0]+2}")
    for i in range(3, 15, 2): a(f"v_max3_f32 v13, v13, v{S[0]+i}, v{S[0]+i+1}")
    a(f"v_max3_f32 v14, v{S[0]+15}, v{S[1]}, v{S[1]+1}")
    for i in range(2, 16, 2): a(f"v_max3_f32 v14, v14, v{S[1]+i}, v{S[1]+i+1}")
    a("v_max_f32 v13, v13, v14")
    a("v_mov_b32 v14, v13")
    a("s_nop 1")
    a("v_permlane32_swap_b32 v13, v14")
    a("s_nop 0")
    a("v_max_f32 v13, v13, v14")
    a(f"v_add_f32 v13, {hex(f2u(MOFF))}, v13")
    for r in range(16): a(f"v_sub_f32 v{NM+r}, 0, v13")
    a("s_nop 1")
    mfma(a, S[0], KB[0], Q, NM)
    a("s_mov_b32 s12, 4")
    a("s_nop 7"); a("s_nop 1")
    stamp(a, 3)
    a(".p2align 6")
    a.label(f"{name}_aloop")
    for t in range(16): attn_unit(a, t)
    a("s_sub_u32 s12, s12, 1")
    a("s_cmp_lg_u32 s12, 0")
    a(f"s_cbranch_scc1 {name}_aloop")
    stamp(a, 4)
    a("s_nop 0")
    mfma(a, O, VB[1] + 4, P + 4)
    a("s_mov_b32 s13, 0")
    a.label(f"{name}_fin")
    a("s_waitcnt vmcnt(0) lgkmcnt(0)")
    a("s_nop 7"); a("s_nop 3")
    a(f"v_mul_f32 v13, 0, v{O}")
    for r in range(1, 9): a(f"v_fma_f32 v13, v{O+r}, 0, v13")
    a("v_cmp_u_f32 vcc, v13, v13")
    a("s_cmp_lg_u32 s13, 0")
    a(f"s_cbranch_scc1 {name}_norm")
    a("s_nop 1")
    a("s_cmp_lg_u64 vcc, 0")
    a(f"s_cbranch_scc1 {name}_fallback")
    a.label(f"{name}_norm")
    a(f"v_rcp_f32 v13, v{O+8}")
    a("s_nop 0")
    for r in range(8): a(f"v_mul_f32 v{O+r}, v{O+r}, v13")
    for r in range(4): a(f"v_cvt_pk_bf16_f32 v{P+r}, v{O+2*r}, v{O+2*r+1}")
    a(f"s_add_u32 s64, s11, {OF_OFF}")
    a(f"buffer_store_dwordx4 v[{P}:{P+3}], v1, s[{SWS}:{SWS+3}], s64 offen")
    stamp(a, 5); stamp_rt(a, 7)
    prof_flush(a, 1, SWS)
    a("s_endpgm")
    a.label(f"{name}_fallback")
    a("v_mov_b32 v13, 0xff800000")
    a("s_mov_b32 s64, 0")
    a.label(f"{name}_fb1")
    a(f"buffer_load_dwordx4 v[{KB[0]}:{KB[0]+3}], v1, s[{SKV}:{SKV+3}], s64 offen")
    a("s_waitcnt vmcnt(0)")
    mfma(a, S[0], KB[0], Q, "0")
    a("s_nop 7"); a("s_nop 3")
    for i in range(0, 16, 2): a(f"v_max3_f32 v13, v13, v{S[0]+i}, v{S[0]+i+1}")
    a("s_add_u32 s64, s64, 2048")
    a("s_cmp_lt_u32 s64, 0x20000")
    a(f"s_cbranch_scc1 {name}_fb1")
    a("v_mov_b32 v14, v13")
    a("s_nop 1")
    a("v_permlane32_swap_b32 v13, v14")
    a("s_nop 0")
    a("v_max_f32 v13, v13, v14")
    for r in range(16): a(f"v_sub_f32 v{NM+r}, 0, v13")
    for r in range(16): a(f"v_mov_b32 v{O+r}, 0")
    a(f"v_sub_u32 v14, v{VV}, v{VK}")
    a("v_add_u32 v14, v14, v1")
    a("s_mov_b32 s64, 0")
    a.label(f"{name}_fb2")
    a(f"buffer_load_dwordx4 v[{KB[0]}:{KB[0]+3}], v1, s[{SKV}:{SKV+3}], s64 offen")
    a(f"s_mov_b64 exec, s[{EXM}:{EXM+1}]")
    a(f"buffer_load_dwordx4 v[{VB[0]}:{VB[0]+3}], v14, s[{SKV}:{SKV+3}], s64 offen")
    a(f"buffer_load_dwordx4 v[{VB[0]+4}:{VB[0]+7}], v14, s[{SKV}:{SKV+3}], s64 offen offset:512")
    a("s_mov_b64 exec, -1")
    a("s_waitcnt vmcnt(0)")
    mfma(a, S[0], KB[0], Q, NM)
    a("s_nop 7"); a("s_nop 3")
    for i in range(16): a(f"v_exp_f32 v{S[0]+i}, v{S[0]+i}")
    a("s_nop 0")
    for i in range(8): a(f"v_cvt_pk_bf16_f32 v{P+i}, v{S[0]+2*i}, v{S[0]+2*i+1}")
    a("s_nop 1")
    mfma(a, O, VB[0], P)
    mfma(a, O, VB[0] + 4, P + 4)
    a("s_nop 7"); a("s_nop 3")
    a("s_add_u32 s64, s64, 2048")
    a("s_cmp_lt_u32 s64, 0x20000")
    a(f"s_cbranch_scc1 {name}_fb2")
    a("s_mov_b32 s13, 1")
    a(f"s_branch {name}_fin")

GACC = 16
GA = [112, 124]
GB = [136, 144]
GVO = [4, 5, 6]
GVA = 7
GVB = 8
STG = 6272

def g_reads(a, rs, buf, s, ks_expr_off):
    for u in range(3):
        A = GA[rs] + 4 * u
        o = buf * STG + s * 1536 + u * 32
        a(f"ds_read_b64_tr_b16 v[{A}:{A+1}], v{GVA} offset:{o}")
        a(f"ds_read_b64_tr_b16 v[{A+2}:{A+3}], v{GVA} offset:{o+384}")
    for rt in range(2):
        B = GB[rs] + 4 * rt
        a(f"ds_read_b128 v[{B}:{B+3}], v{GVB} offset:{rt*32*XPITCH + ks_expr_off}")
def g_mfmas(a, rs, first=False):
    for u in range(3):
        for rt in range(2):
            mfma(a, GACC + (u * 2 + rt) * 16, GA[rs] + 4 * u, GB[rs] + 4 * rt, "0" if first else None)
def g_dma(a, buf):
    for m, srd_ in ((0, SW1), (1, SW3)):
        for i in range(3):
            a(f"s_add_u32 m0, s65, {buf*STG + m*3200 + i*1024}")
            a("s_nop 0")
            a(f"buffer_load_dwordx4 v{GVO[i]}, s[{srd_}:{srd_+3}], s64 offen lds")
    a(f"s_add_u32 s64, s64, {32*2752}")

def gen_g_gateup(a, name):
    a("s_sub_u32 s9, s8, 8              ; g")
    a("s_lshl_b32 s64, s7, 6")
    a("s_lshl_b32 s65, s9, 4")
    a("s_add_u32 s64, s64, s65")
    a("s_lshl_b32 s64, s64, 10")
    a(f"s_mul_i32 s65, s9, {16*XPITCH}")
    for i in range(16):
        a("s_mov_b32 m0, s65")
        a(f"s_add_u32 s65, s65, {XPITCH}")
        a(f"buffer_load_dwordx4 v1, s[{SWS}:{SWS+3}], s64 offen lds")
        a("s_add_u32 s64, s64, 1024")
    a("s_lshl_b32 s10, s6, 2")
    a("s_add_u32 s10, s10, s9           ; gw")
    for i in range(3):
        a(f"v_add_u32 v10, {64*i}, v0")
        a("v_mul_u32_u24 v11, 43691, v10")
        a("v_lshrrev_b32 v11, 18, v11      ; row = L/6")
        a("v_mul_u32_u24 v12, 6, v11")
        a("v_sub_u32 v12, v10, v12          ; piece")
        a("v_mul_u32_u24 v11, 2752, v11")
        a(f"v_lshl_add_u32 v{GVO[i]}, v12, 4, v11")
    a("s_mul_i32 s64, s10, 96")
    a(f"s_mul_i32 s65, s9, {GSZ}")
    a(f"s_add_u32 s65, s65, {GS}")
    import os
    if os.environ.get("NOG"): a(f"s_branch {name}_gidle")
    a("s_cmp_gt_u32 s10, 28")
    a(f"s_cbranch_scc1 {name}_gidle")
    g_dma(a, 0); g_dma(a, 1)
    a("v_bfe_u32 v10, v0, 2, 2          ; r")
    a("v_lshl_add_u32 v10, v3, 3, v10   ; 8h + r")
    a("v_mul_u32_u24 v10, 96, v10")
    a("v_and_b32 v11, 3, v0")
    a("v_lshl_add_u32 v10, v11, 3, v10")
    a("v_bfe_u32 v11, v0, 4, 1")
    a("v_mul_u32_u24 v11, 3200, v11")
    a("v_add_u32 v10, v10, v11")
    a(f"v_add_u32 v{GVA}, s65, v10")
    a(f"v_mul_u32_u24 v{GVB}, {XPITCH}, v2")
    a(f"v_lshl_add_u32 v{GVB}, v3, 4, v{GVB}")
    stamp(a, 1)
    a("s_waitcnt vmcnt(12)")
    a("s_barrier")
    stamp(a, 2)
    a("s_waitcnt vmcnt(6)")
    g_reads(a, 0, 0, 0, 0)
    def stage(buf, kso, first=False, last=False, dma=True):
        g_reads(a, 1, buf, 1, kso + 32)
        a("s_waitcnt lgkmcnt(8)")
        g_mfmas(a, 0, first)
        if not last:
            a("s_waitcnt vmcnt(0) lgkmcnt(0)")
            if dma: g_dma(a, buf)
            g_reads(a, 0, 1 - buf, 0, kso + 64)
        else:
            a("s_waitcnt lgkmcnt(0)")
        g_mfmas(a, 1)
    stage(0, 0, first=True)
    stage(1, 64)
    a(f"v_add_u32 v{GVB}, 128, v{GVB}")
    a("s_mov_b32 s12, 6")
    a.label(f"{name}_gloop")
    stage(0, 0)
    stage(1, 64)
    a(f"v_add_u32 v{GVB}, 128, v{GVB}")
    a("s_sub_u32 s12, s12, 1")
    a("s_cmp_lg_u32 s12, 0")
    a(f"s_cbranch_scc1 {name}_gloop")
    stage(0, 0, dma=False)
    stage(1, 64, last=True)
    stamp(a, 4)
    a("s_nop 7"); a("s_nop 3")
    a(f"s_mov_b32 s66, {hex(f2u(-1.4426950408889634))}")
    a("s_mov_b32 s67, s66")
    a("s_mov_b32 s68, 1.0")
    a("s_mov_b32 s69, 1.0")
    a(f"s_mul_i32 s70, s7, {2*NFT}")
    a("s_mul_i32 s71, s10, 3")
    a("s_add_u32 s70, s70, s71")
    a("s_lshl_b32 s70, s70, 10")
    a(f"s_add_u32 s70, s70, {HF_OFF}")
    T = 112
    for u in range(3):
        for rt in range(2):
            A = GACC + (u * 2 + rt) * 16
            for i in range(0, 8, 2):
                a(f"v_pk_mul_f32 v[{T+i}:{T+i+1}], v[{A+i}:{A+i+1}], s[66:67]")
            for i in range(8): a(f"v_exp_f32 v{T+i}, v{T+i}")
            for i in range(0, 8, 2):
                a(f"v_pk_mul_f32 v[{A+i}:{A+i+1}], v[{A+i}:{A+i+1}], v[{A+8+i}:{A+9+i}]")
            for i in range(0, 8, 2):
                a(f"v_pk_add_f32 v[{T+i}:{T+i+1}], v[{T+i}:{T+i+1}], s[68:69]")
            for i in range(8): a(f"v_rcp_f32 v{T+i}, v{T+i}")
            a("s_nop 0")
            for i in range(0, 8, 2):
                a(f"v_pk_mul_f32 v[{A+i}:{A+i+1}], v[{A+i}:{A+i+1}], v[{T+i}:{T+i+1}]")
            D = 120 + 4 * ((u * 2 + rt) & 1)
            for i in range(4): a(f"v_cvt_pk_bf16_f32 v{D+i}, v{A+2*i}, v{A+2*i+1}")
            if u == 2:
                a("s_cmp_eq_u32 s10, 28")
                a(f"s_cbranch_scc0 {name}_nz{rt}")
                for i in range(4): a(f"v_mov_b32 v{D+i}, 0")
                a(f"s_add_u32 s71, s70, {(rt*NFT + u + 1)*1024}")
                a(f"buffer_store_dwordx4 v[{D}:{D+3}], v1, s[{SWS}:{SWS+3}], s71 offen")
                a.label(f"{name}_nz{rt}")
            a(f"s_add_u32 s71, s70, {(rt*NFT + u)*1024}")
            a(f"buffer_store_dwordx4 v[{D}:{D+3}], v1, s[{SWS}:{SWS+3}], s71 offen")
    stamp(a, 5); stamp_rt(a, 7)
    prof_flush(a, 1, SWS)
    a("s_endpgm")
    a.label(f"{name}_gidle")
    a("s_waitcnt vmcnt(0)")
    a("s_barrier")
    stamp(a, 5); stamp_rt(a, 7)
    prof_flush(a, 1, SWS)
    a("s_endpgm")

def gen_k2(a):
    name = "k2_kernel"
    prologue(a, name)
    stamp(a, 0); stamp_rt(a, 6)
    a("s_getreg_b32 s88, hwreg(HW_REG_HW_ID)")
    srd(a, SWS, P_WS, WS_SIZE)
    a(f"s_add_u32 s{SKV}, s{P_WS}, {KV_OFF}")
    a(f"s_addc_u32 s{SKV+1}, s{P_WS+1}, 0")
    a(f"s_mov_b32 s{SKV+2}, 0x20000")
    a(f"s_mov_b32 s{SKV+3}, 0x20000")
    srd(a, SW1, P_W1, 512 * 2752)
    srd(a, SW3, P_W3, 512 * 2752)
    a("v_and_b32 v2, 31, v0            ; n")
    a("v_lshrrev_b32 v3, 5, v0         ; h")
    a("s_cmp_ge_u32 s8, 8")
    a(f"s_cbranch_scc1 {name}_g")
    gen_a_wave(a, name)
    a.label(f"{name}_g")
    gen_g_gateup(a, name)
    a.label(f"{name}_exit")
    a("s_endpgm")
    return name, 168, K2_LDS, 768
```

```python
from common import *

WO = 0
RING = 65536
RSZ = 6 * 2048
RED = 65536
EX = 65536 + 49152
K3_LDS = EX + 16384
SWS, SW2, SWO, SX, SOUT = 40, 44, 48, 52, 56
ACC = 16
BR = 80
AF = [128, 136]
NS = 22
DEPTH = 6

def lane_tr_perm(a, dst, tmp):
    a(f"v_bfe_u32 v{dst}, v0, 2, 2          ; r")
    a(f"v_lshl_add_u32 v{dst}, v3, 2, v{dst}  ; 4h + r")
    a(f"v_lshlrev_b32 v{dst}, 7, v{dst}")
    a(f"v_bfe_u32 v{tmp}, v0, 4, 1")
    a(f"v_lshlrev_b32 v{tmp}, 1, v{tmp}")
    a(f"v_bfe_u32 v{tmp+1}, v0, 1, 1        ; c>>1")
    a(f"v_add_u32 v{tmp}, v{tmp}, v{tmp+1}")
    a(f"v_bfe_u32 v{tmp+1}, v0, 3, 1        ; (r>>1)&1")
    a(f"v_lshlrev_b32 v{tmp+1}, 2, v{tmp+1}")
    a(f"v_xor_b32 v{tmp}, v{tmp}, v{tmp+1}")
    a(f"v_lshl_add_u32 v{dst}, v{tmp}, 4, v{dst}")
    a(f"v_and_b32 v{tmp}, 1, v0")
    a(f"v_lshl_add_u32 v{dst}, v{tmp}, 3, v{dst}")
def lane_dma128(a, dst, tmp):
    a(f"v_lshrrev_b32 v{dst}, 3, v0")
    a(f"v_bfe_u32 v{tmp}, v{dst}, 1, 1")
    a(f"v_lshlrev_b32 v{tmp}, 2, v{tmp}")
    a(f"v_and_b32 v{tmp+1}, 7, v0")
    a(f"v_xor_b32 v{tmp}, v{tmp}, v{tmp+1}")
    a(f"v_lshlrev_b32 v{tmp}, 4, v{tmp}")
    a(f"v_lshl_add_u32 v{dst}, v{dst}, 10, v{tmp}")

def down_issue(a, s):
    slot = s % DEPTH
    for i in range(2):
        a(f"s_add_u32 m0, s65, {slot*2048 + i*1024}")
        a("s_nop 0")
        a(f"buffer_load_dwordx4 v4, s[{SW2}:{SW2+3}], s64 offen lds")
        a("s_add_u32 s64, s64, 8192")
    for rt in range(2):
        B = BR + slot * 8 + rt * 4
        a(f"buffer_load_dwordx4 v[{B}:{B+3}], v1, s[{SWS}:{SWS+3}], s{66+rt} offen")
        a(f"s_add_u32 s{66+rt}, s{66+rt}, 1024")
def a_reads(a, rs, v0reg, v1reg, off):
    for ct, vr_ in ((0, v0reg), (1, v1reg)):
        A = AF[rs] + 4 * ct
        a(f"ds_read_b64_tr_b16 v[{A}:{A+1}], v{vr_} offset:{off}")
        a(f"ds_read_b64_tr_b16 v[{A+2}:{A+3}], v{vr_} offset:{off+1024}")

def gen_down(a, name):
    a(f"s_mul_i32 s64, s9, {NS*16*1024}")
    a("s_lshl_b32 s65, s6, 7")
    a("s_add_u32 s64, s64, s65           ; W2 soffset")
    a(f"s_mul_i32 s65, s9, {RSZ}")
    a(f"s_add_u32 s65, s65, {RING}")
    a(f"s_mul_i32 s66, s7, {2*NFT}")
    a(f"s_mul_i32 s67, s9, {NS}")
    a("s_add_u32 s66, s66, s67")
    a("s_lshl_b32 s66, s66, 10")
    a(f"s_add_u32 s66, s66, {HF_OFF}")
    a(f"s_add_u32 s67, s66, {NFT*1024}")
    a("v_add_u32 v5, s65, v7")
    a("v_xor_b32 v6, 64, v5")
    for s in range(DEPTH): down_issue(a, s)
    a(f"s_waitcnt vmcnt({4*(DEPTH-1)})")
    a_reads(a, 0, 5, 6, 0)
    for s in range(NS):
        if s + 1 < NS:
            issued = min(NS, s + DEPTH)
            a(f"s_waitcnt vmcnt({4*(issued-(s+2))})")
            a_reads(a, (s + 1) % 2, 5, 6, ((s + 1) % DEPTH) * 2048)
            a("s_waitcnt lgkmcnt(4)")
        else:
            a("s_waitcnt lgkmcnt(0)")
        slot = s % DEPTH
        for ct in range(2):
            for rt in range(2):
                mfma(a, ACC + (ct * 2 + rt) * 16, AF[s % 2] + 4 * ct, BR + slot * 8 + rt * 4, "0" if s == 0 else None)
        if s + DEPTH < NS: down_issue(a, s + DEPTH)

def gen_k3(a):
    name = "k3_kernel"
    prologue(a, name)
    srd(a, SWS, P_WS, WS_SIZE)
    srd(a, SW2, P_W2, 1376 * 1024)
    srd(a, SWO, P_WO, 512 * 1024)
    srd(a, SX, P_X, 2048 * 1024)
    srd(a, SOUT, P_OUT, 2048 * 1024)
    a("v_and_b32 v2, 31, v0            ; n")
    a("v_lshrrev_b32 v3, 5, v0         ; h")
    a("s_mov_b32 s9, s8                 ; g")
    lane_dma128(a, 4, 10)
    lane_tr_perm(a, 7, 10)
    a("s_lshl_b32 s64, s9, 17           ; 16g*8192")
    a("s_lshl_b32 s65, s6, 7")
    a("s_add_u32 s64, s64, s65")
    a("s_lshl_b32 s65, s9, 14")
    for i in range(16):
        a("s_mov_b32 m0, s65")
        a("s_add_u32 s65, s65, 1024")
        a(f"buffer_load_dwordx4 v4, s[{SWO}:{SWO+3}], s64 offen lds")
        a("s_add_u32 s64, s64, 8192")
    gen_down(a, name)
    a("s_lshr_b32 s10, s9, 1            ; rt")
    a("s_and_b32 s11, s9, 1")
    a("s_lshl_b32 s64, s7, 1")
    a("s_add_u32 s64, s64, s10")
    a("s_lshl_b32 s64, s64, 5")
    a("s_lshl_b32 s65, s11, 4")
    a("s_add_u32 s64, s64, s65")
    a("s_lshl_b32 s64, s64, 10")
    a(f"s_add_u32 s64, s64, {OF_OFF}")
    a("s_nop 4")
    for i in range(16):
        a(f"buffer_load_dwordx4 v[{80+4*i}:{83+4*i}], v1, s[{SWS}:{SWS+3}], s64 offen offset:{(i%4)*1024}")
        if i % 4 == 3: a("s_add_u32 s64, s64, 4096")
    a("v_lshlrev_b32 v8, 10, v2")
    a("v_lshl_add_u32 v8, v3, 3, v8      ; n*1024 + h*8")
    a("s_lshl_b32 s68, s7, 6")
    a("s_lshl_b32 s69, s10, 5")
    a("s_add_u32 s68, s68, s69")
    a("s_lshl_b32 s68, s68, 10")
    a("s_lshl_b32 s69, s6, 7")
    a("s_add_u32 s68, s68, s69")
    a("s_lshl_b32 s69, s11, 6")
    a("s_add_u32 s68, s68, s69")
    for q in range(4):
        a(f"buffer_load_dwordx2 v[{144+2*q}:{145+2*q}], v8, s[{SX}:{SX+3}], s68 offen offset:{q*16}")
    a("s_barrier")
    for ct in range(2):
        for rt in range(2):
            owner = 2 * rt + ct
            T = ACC + (ct * 2 + rt) * 16
            a(f"s_cmp_eq_u32 s9, {owner}")
            a(f"s_cbranch_scc1 {name}_skipw{owner}")
            a(f"s_sub_u32 s64, s9, {owner+1}")
            a("s_and_b32 s64, s64, 3")
            a("s_lshl_b32 s64, s64, 12")
            a(f"s_add_u32 s64, s64, {RED + owner*12288}")
            a("v_add_u32 v9, s64, v1")
            for q in range(4):
                a(f"ds_write_b128 v9, v[{T+4*q}:{T+4*q+3}] offset:{q*1024}")
            a.label(f"{name}_skipw{owner}")
    for owner in range(4):
        ct, rt = owner & 1, owner >> 1
        T = ACC + (ct * 2 + rt) * 16
        a(f"s_cmp_eq_u32 s9, {owner}")
        a(f"s_cbranch_scc0 {name}_nmv{owner}")
        for r in range(16): a(f"v_mov_b32 v{152+r}, v{T+r}")
        a.label(f"{name}_nmv{owner}")
    a("s_waitcnt lgkmcnt(0)")
    a("s_barrier")
    a("s_mul_i32 s64, s9, 12288")
    a(f"s_add_u32 s64, s64, {RED}")
    a("v_add_u32 v9, s64, v1")
    for p in range(3):
        for q in range(4):
            a(f"ds_read_b128 v[{16+16*p+4*q}:{19+16*p+4*q}], v9 offset:{p*4096+q*1024}")
    a("s_waitcnt lgkmcnt(0)")
    for r in range(16):
        a(f"v_add_f32 v{152+r}, v{152+r}, v{16+r}")
        a(f"v_add_f32 v{32+r}, v{32+r}, v{48+r}")
    for r in range(16): a(f"v_add_f32 v{152+r}, v{152+r}, v{32+r}")
    a(f"s_mov_b32 s66, {hex(f2u(-1.4426950408889634))}")
    a("s_mov_b32 s67, s66")
    a("s_mov_b32 s70, 1.0")
    a("s_mov_b32 s71, 1.0")
    for i in range(0, 16, 2): a(f"v_pk_mul_f32 v[{16+i}:{17+i}], v[{152+i}:{153+i}], s[66:67]")
    for i in range(16): a(f"v_exp_f32 v{16+i}, v{16+i}")
    a("s_nop 0")
    for i in range(0, 16, 2): a(f"v_pk_add_f32 v[{16+i}:{17+i}], v[{16+i}:{17+i}], s[70:71]")
    for i in range(16): a(f"v_rcp_f32 v{16+i}, v{16+i}")
    a("s_nop 0")
    for i in range(0, 16, 2): a(f"v_pk_mul_f32 v[{152+i}:{153+i}], v[{152+i}:{153+i}], v[{16+i}:{17+i}]")
    a("s_lshl_b32 s64, s11, 15           ; kh*16*2048")
    a(f"s_add_u32 s64, s64, {WO}")
    a("v_add_u32 v5, s64, v7")
    a("v_xor_b32 v6, 64, v5")
    a("s_waitcnt vmcnt(4)")
    OA = [16, 32]
    global AF
    saveAF = AF
    AF = [48, 56]
    a_reads(a, 0, 5, 6, 0)
    for i in range(16):
        if i + 1 < 16:
            a_reads(a, (i + 1) % 2, 5, 6, (i + 1) * 2048)
            a("s_waitcnt lgkmcnt(4)")
        else: a("s_waitcnt lgkmcnt(0)")
        for ct in range(2):
            mfma(a, OA[ct], AF[i % 2] + 4 * ct, 80 + 4 * i, "0" if i == 0 else None)
    AF = saveAF
    a("s_lshl_b32 s64, s9, 12")
    a(f"s_add_u32 s64, s64, {EX}")
    a("v_add_u32 v9, s64, v1")
    a("s_xor_b32 s65, s9, 1")
    a("s_lshl_b32 s65, s65, 12")
    a(f"s_add_u32 s65, s65, {EX}")
    a("v_add_u32 v10, s65, v1")
    a("s_nop 7")
    a("s_cmp_eq_u32 s11, 0")
    a(f"s_cbranch_scc0 {name}_ex1")
    for q in range(4): a(f"ds_write_b128 v9, v[{OA[1]+4*q}:{OA[1]+4*q+3}] offset:{q*1024}")
    a(f"s_branch {name}_exj")
    a.label(f"{name}_ex1")
    for q in range(4): a(f"ds_write_b128 v9, v[{OA[0]+4*q}:{OA[0]+4*q+3}] offset:{q*1024}")
    for r in range(16): a(f"v_mov_b32 v{OA[0]+r}, v{OA[1]+r}")
    a.label(f"{name}_exj")
    a("s_waitcnt lgkmcnt(0)")
    a("s_barrier")
    for q in range(4): a(f"ds_read_b128 v[{32+4*q}:{35+4*q}], v10 offset:{q*1024}")
    a("v_mov_b32 v11, 0xffff0000")
    a("s_waitcnt vmcnt(0) lgkmcnt(0)")
    for r in range(16): a(f"v_add_f32 v{16+r}, v{16+r}, v{32+r}")
    for q in range(4):
        for i in range(2):
            x = 144 + 2 * q + i
            r = 4 * q + 2 * i
            a(f"v_lshlrev_b32 v48, 16, v{x}")
            a(f"v_and_b32 v49, v11, v{x}")
            a(f"v_fma_f32 v48, v{16+r}, v{152+r}, v48")
            a(f"v_fma_f32 v49, v{16+r+1}, v{152+r+1}, v49")
            a(f"v_cvt_pk_bf16_f32 v{x}, v48, v49")
        a(f"buffer_store_dwordx2 v[{144+2*q}:{145+2*q}], v8, s[{SOUT}:{SOUT+3}], s68 offen offset:{q*16}")
    a.label(f"{name}_exit")
    a("s_endpgm")
    return name, 168, K3_LDS, 256
```

```python
from build import build
import common, k1, k2, k3, sys
if len(sys.argv) > 1 and sys.argv[1] == 'prof': common.PROF = True
build([k1.gen_k1, k2.gen_k2, k3.gen_k3], sys.argv[2] if len(sys.argv) > 2 else "out_v1.s")
```

```python
import os
from common import *

NAME = "recurrent_scan__grouped_kv_mqa__glu_gated_swiglu__prompt_kernel"
KVR = 0
WQ = 0
QX = 32768
KRED = 49152
XR = 65536
WKV = 132096
ST = 148480
GSZ = 12800
GS = [32768, 32768 + GSZ, 132096, 132096 + GSZ]
WO = XR
RED = [32768, 32768 + 12288, 132096, 132096 + 12288]
EX = [32768, 32768 + 4096, 132096, 132096 + 4096]
LC = 157696
LDS_SIZE = LC + 64
KV_O = 0x000000
CN_O = 0x020000
HF_O = 0x100000
OF_O = 0x700000
WS_SZ = 0xA00000
PRF_O = 0x900000
NF = 86
MOFF = 80.0

SWS, SKV, SG0, SG1, SG2, SDBG = 40, 44, 48, 52, 56, 60
EXM = 64

def lds_lane0(a, ins):
    a("s_mov_b64 exec, 1"); a(ins); a("s_mov_b64 exec, -1")

def gsync(a, tag, vaddr, vtmp, starget):
    a("s_waitcnt lgkmcnt(0)")
    a(f"s_add_u32 s{starget}, s{starget}, 4")
    a("s_mov_b64 exec, 1")
    a(f"v_mov_b32 v{vtmp}, 1")
    a(f"ds_add_u32 v{vaddr}, v{vtmp} offset:12")
    a("s_mov_b64 exec, -1")
    a.label(f"gs_{tag}")
    a(f"ds_read_b32 v{vtmp}, v{vaddr} offset:12")
    a("s_waitcnt lgkmcnt(0)")
    a(f"v_readfirstlane_b32 s66, v{vtmp}")
    a("s_nop 0")
    a(f"s_cmp_ge_u32 s66, s{starget}")
    a(f"s_cbranch_scc1 gs_{tag}_ok")
    a("s_sleep 1")
    a(f"s_branch gs_{tag}")
    a.label(f"gs_{tag}_ok")

def poll_word(a, tag, voff, vtmp, soff, target, srd_):
    a.label(f"pw_{tag}")
    a(f"buffer_load_dword v{vtmp}, v{voff}, s[{srd_}:{srd_+3}], s{soff} offen sc1")
    a("s_waitcnt vmcnt(0)")
    a(f"v_readfirstlane_b32 s66, v{vtmp}")
    a("s_nop 0")
    a(f"s_cmp_ge_u32 s66, {target}")
    a(f"s_cbranch_scc1 pw_{tag}_ok")
    a("s_sleep 4")
    a(f"s_branch pw_{tag}")
    a.label(f"pw_{tag}_ok")

Q = 4; VKA = 8; VKB = 9; VVA = 10; VVB = 11; VLC = 12; VONE = 13; VCNT = 14
S = [16, 32]; P = 48; O = 56; NM = 72; KB = [88, 92]; VB = [96, 104]

def attn_unit(a, t):
    p = t & 1
    Sc, Sn = S[p], S[1 - p]
    E = [f"v_exp_f32 v{Sc+i}, v{Sc+i}" for i in range(16)]
    C = [f"v_cvt_pk_bf16_f32 v{P+i}, v{Sc+2*i}, v{Sc+2*i+1}" for i in range(8)]
    Vprev = VB[(t - 1) & 1]; Vc = VB[t & 1]; Vn = VB[(t + 1) & 1]
    a(f"s_setprio {3 - (t % 4)}")
    a("s_waitcnt lgkmcnt(0)")
    if t % 4 == 0:
        a("s_waitcnt vmcnt(1)")
        lds_lane0(a, f"ds_add_u32 v{VLC}, v{VONE}")
    a(E[0])
    if t % 4 == 2: a(f"v_readfirstlane_b32 s70, v{VCNT}")
    mfma(a, O, Vprev + 4, P + 4)
    a(E[1])
    if t % 4 == 2:
        a("s_cmp_ge_u32 s70, s71")
        a(f"s_cbranch_scc1 a_ok{t}")
        a.label(f"a_spin{t}")
        a("s_sleep 1")
        a(f"ds_read_b32 v{VCNT}, v{VLC}")
        a("s_waitcnt lgkmcnt(0)")
        a(f"v_readfirstlane_b32 s70, v{VCNT}")
        a("s_nop 0")
        a("s_cmp_ge_u32 s70, s71")
        a(f"s_cbranch_scc0 a_spin{t}")
        a.label(f"a_ok{t}")
        a("s_add_u32 s71, s71, 8")
        a("s_add_u32 m0, s73, s74")
        a("s_add_u32 s72, s72, 8192")
        a(f"buffer_load_dwordx4 v1, s[{SKV}:{SKV+3}], s72 offen sc1 lds")
        a("s_add_u32 s74, s74, 8192")
        a("s_and_b32 s74, s74, 0x7fff")
    for i in range(2, 5): a(E[i])
    mfma(a, Sn, KB[(t + 1) & 1], Q, NM)
    tv = t + 1; tk = t + 2
    vreg = VVA if (tv < 4 or tv >= 8) else VVB
    kreg = VKA if (tk < 4 or tk >= 8) else VKB
    a(f"s_mov_b64 exec, s[{EXM}:{EXM+1}]")
    a(f"ds_read_b128 v[{Vn}:{Vn+3}], v{vreg} offset:{(tv%4)*2048}")
    a(f"ds_read_b128 v[{Vn+4}:{Vn+7}], v{vreg} offset:{(tv%4)*2048+512}")
    a("s_mov_b64 exec, -1")
    Kl = KB[t & 1]
    a(f"ds_read_b128 v[{Kl}:{Kl+3}], v{kreg} offset:{(tk%4)*2048}")
    if t % 4 == 1: a(f"ds_read_b32 v{VCNT}, v{VLC}")
    if t == 1: a(f"v_xor_b32 v{VKA}, 16384, v{VKA}")
    if t == 2: a(f"v_xor_b32 v{VVA}, 16384, v{VVA}")
    if t == 5: a(f"v_xor_b32 v{VKB}, 16384, v{VKB}")
    if t == 6: a(f"v_xor_b32 v{VVB}, 16384, v{VVB}")
    for i in range(5, 10): a(E[i])
    for i in range(0, 4): a(C[i])
    a(E[10]); a(E[11])
    mfma(a, O, Vc, P)
    for i in range(12, 16): a(E[i])
    for i in range(4, 8): a(C[i])

def lane_tr_nat(a, dst, tmp):
    a(f"v_bfe_u32 v{dst}, v0, 2, 2")
    a(f"v_lshl_add_u32 v{dst}, v3, 3, v{dst}")
    tr_tail(a, dst, tmp)
def lane_tr_perm(a, dst, tmp):
    a(f"v_bfe_u32 v{dst}, v0, 2, 2")
    a(f"v_lshl_add_u32 v{dst}, v3, 2, v{dst}")
    tr_tail(a, dst, tmp)
def tr_tail(a, dst, tmp):
    a(f"v_lshlrev_b32 v{dst}, 7, v{dst}")
    a(f"v_bfe_u32 v{tmp}, v0, 4, 1")
    a(f"v_lshlrev_b32 v{tmp}, 1, v{tmp}")
    a(f"v_bfe_u32 v{tmp+1}, v0, 1, 1")
    a(f"v_add_u32 v{tmp}, v{tmp}, v{tmp+1}")
    a(f"v_bfe_u32 v{tmp+1}, v0, 3, 1")
    a(f"v_lshlrev_b32 v{tmp+1}, 2, v{tmp+1}")
    a(f"v_xor_b32 v{tmp}, v{tmp}, v{tmp+1}")
    a(f"v_lshl_add_u32 v{dst}, v{tmp}, 4, v{dst}")
    a(f"v_and_b32 v{tmp}, 1, v0")
    a(f"v_lshl_add_u32 v{dst}, v{tmp}, 3, v{dst}")
def lane_dma128(a, dst, tmp):
    a(f"v_lshrrev_b32 v{dst}, 3, v0")
    a(f"v_bfe_u32 v{tmp}, v{dst}, 1, 1")
    a(f"v_lshlrev_b32 v{tmp}, 2, v{tmp}")
    a(f"v_and_b32 v{tmp+1}, 7, v0")
    a(f"v_xor_b32 v{tmp}, v{tmp}, v{tmp+1}")
    a(f"v_lshlrev_b32 v{tmp}, 4, v{tmp}")
    a(f"v_lshl_add_u32 v{dst}, v{dst}, 10, v{tmp}")

def dma_loop(a, tag, n, voff, srd_, s_glob, s_lds, gstep, lstep, sc1=False):
    for i in range(n):
        a(f"s_mov_b32 m0, s{s_lds}")
        a(f"s_add_u32 s{s_lds}, s{s_lds}, {lstep}")
        a(f"buffer_load_dwordx4 v{voff}, s[{srd_}:{srd_+3}], s{s_glob} offen{' sc1' if sc1 else ''} lds")
        a(f"s_add_u32 s{s_glob}, s{s_glob}, {gstep}")

def gen_a(a):
    a("s_lshl_b32 s66, s7, 6")
    a("s_mul_i32 s67, s8, 6")
    a("s_add_u32 s66, s66, s67")
    a("s_lshl_b32 s66, s66, 10")
    a(f"s_mul_i32 s67, s8, {6*XPITCH}")
    a(f"s_add_u32 s67, s67, {XR}")
    dma_loop(a, "ax", 6, 1, SG0, 66, 67, 1024, XPITCH)
    a("s_lshl_b32 s66, s8, 15")
    a("s_lshl_b32 s68, s6, 7")
    a("s_add_u32 s66, s66, s68")
    a("s_lshl_b32 s67, s8, 12")
    dma_loop(a, "aq", 4, 4, SG1, 66, 67, 8192, 1024)
    a("s_and_b32 s9, s8, 1             ; rt")
    a("s_lshr_b32 s10, s8, 1")
    a(f"v_mul_u32_u24 v7, {XPITCH}, v2")
    a("v_lshl_add_u32 v7, v3, 4, v7    ; n*pitch + h*16")
    a(f"s_mul_i32 s66, s9, {32*XPITCH}")
    a("s_lshl_b32 s67, s10, 8")
    a("s_add_u32 s67, s67, s66")
    a(f"s_add_u32 s67, s67, {XR}")
    a("v_add_u32 v8, s67, v7")
    stamp(a, 1)
    a("s_waitcnt vmcnt(4)")
    a("s_barrier                        ; B1")
    stamp(a, 2)
    X = 16
    for s in range(8):
        a(f"ds_read_b128 v[{X+4*s}:{X+4*s+3}], v8 offset:{s*32}")
    a("v_mov_b32 v9, 0x3f803f80")
    for r in range(10, 14): a(f"v_mov_b32 v{r}, 0")
    for s in range(8):
        a(f"s_waitcnt lgkmcnt({7-s})")
        for q in range(4):
            r = X + 4 * s + q
            a(f"v_dot2_f32_bf16 v{10+(q&1)}, v{r}, v9, v{10+(q&1)}")
            a(f"v_dot2_f32_bf16 v{12+(q&1)}, v{r}, v{r}, v{12+(q&1)}")
    a("s_lshl_b32 s66, s9, 11")
    a("s_lshl_b32 s67, s10, 9")
    a("s_add_u32 s66, s66, s67")
    a(f"s_add_u32 s66, s66, {ST}")
    a("v_lshlrev_b32 v14, 3, v0")
    a("v_add_u32 v14, s66, v14")
    a("v_add_f32 v10, v10, v11")
    a("v_add_f32 v11, v12, v13")
    a("ds_write_b64 v14, v[10:11]")
    a("s_waitcnt lgkmcnt(0)")
    a("s_barrier                        ; B2")
    a("s_lshl_b32 s66, s9, 11")
    a(f"s_add_u32 s66, s66, {ST}")
    a("v_lshlrev_b32 v14, 3, v2")
    a("v_add_u32 v14, s66, v14")
    for q in range(8):
        a(f"ds_read_b64 v[{48+2*q}:{49+2*q}], v14 offset:{q*256}")
    a("s_waitcnt lgkmcnt(0)")
    for step in (8, 4, 2):
        for q in range(0, step, 2):
            a(f"v_add_f32 v{48+q}, v{48+q}, v{48+q+step}")
            a(f"v_add_f32 v{49+q}, v{49+q}, v{49+q+step}")
    a(f"v_mul_f32 v48, {hex(f2u(1/512))}, v48")
    a(f"v_mul_f32 v49, {hex(f2u(1/512))}, v49")
    a("v_fma_f32 v49, -v48, v48, v49")
    a("v_max_f32 v49, 0, v49")
    a(f"v_add_f32 v49, {hex(f2u(1e-5))}, v49")
    a("v_rsq_f32 v49, v49")
    a("s_nop 0")
    a("v_mul_f32 v48, v48, v49")
    a("v_sub_f32 v48, 0, v48")
    a("v_mov_b32 v15, 0xffff0000")
    for r in range(32):
        x = X + r
        t0, t1 = 50 + 2 * (r & 1), 51 + 2 * (r & 1)
        a(f"v_lshlrev_b32 v{t0}, 16, v{x}")
        a(f"v_and_b32 v{t1}, v15, v{x}")
        a(f"v_fma_f32 v{t0}, v{t0}, v49, v48")
        a(f"v_fma_f32 v{t1}, v{t1}, v49, v48")
        a(f"v_cvt_pk_bf16_f32 v{x}, v{t0}, v{t1}")
        if r % 4 == 3:
            s = r // 4
            a(f"ds_write_b128 v8, v[{X+4*s}:{X+4*s+3}] offset:{s*32}")
    a("s_lshr_b32 s11, s8, 2           ; ft")
    a("s_bfe_u32 s12, s8, 0x10001      ; kh")
    lane_tr_nat(a, 23, 20)
    a("s_lshl_b32 s66, s11, 6")
    a("v_xor_b32 v23, s66, v23")
    a("s_lshl_b32 s66, s12, 15")
    a(f"s_add_u32 s66, s66, {WQ}")
    a("v_add_u32 v23, s66, v23          ; A addr")
    a(f"s_mul_i32 s66, s9, {32*XPITCH}")
    a("s_lshl_b32 s67, s12, 9")
    a("s_add_u32 s66, s66, s67")
    a(f"s_add_u32 s66, s66, {XR}")
    a("v_add_u32 v24, s66, v7           ; B addr")
    stamp(a, 3)
    a("s_waitcnt vmcnt(0) lgkmcnt(0)")
    a("s_barrier                        ; B3")
    ACC = 64; AB = [80, 84, 88]; BB = [92, 96, 100]
    def ld(s):
        A = AB[s % 3]; B = BB[s % 3]
        a(f"ds_read_b64_tr_b16 v[{A}:{A+1}], v23 offset:{s*2048}")
        a(f"ds_read_b64_tr_b16 v[{A+2}:{A+3}], v23 offset:{s*2048+512}")
        a(f"ds_read_b128 v[{B}:{B+3}], v24 offset:{s*32}")
    ld(0); ld(1)
    for s in range(16):
        if s + 2 < 16:
            ld(s + 2); a("s_waitcnt lgkmcnt(6)")
        elif s + 1 < 16: a("s_waitcnt lgkmcnt(3)")
        else: a("s_waitcnt lgkmcnt(0)")
        mfma(a, ACC, AB[s % 3], BB[s % 3], "0" if s == 0 else None)
    a("s_barrier                        ; B4")
    a("s_lshl_b32 s66, s8, 11")
    a(f"s_add_u32 s66, s66, {QX}")
    a("v_add_u32 v14, s66, v1")
    a("s_xor_b32 s67, s8, 2")
    a("s_lshl_b32 s67, s67, 11")
    a(f"s_add_u32 s67, s67, {QX}")
    a("v_add_u32 v15, s67, v1")
    a("s_nop 6")
    a("s_cmp_eq_u32 s12, 0")
    a("s_cbranch_scc0 a_kh1")
    a(f"ds_write_b128 v14, v[{ACC+8}:{ACC+11}]")
    a(f"ds_write_b128 v14, v[{ACC+12}:{ACC+15}] offset:1024")
    for r in range(8): a(f"v_mov_b32 v{48+r}, v{ACC+r}")
    a("s_branch a_khj")
    a.label("a_kh1")
    a(f"ds_write_b128 v14, v[{ACC}:{ACC+3}]")
    a(f"ds_write_b128 v14, v[{ACC+4}:{ACC+7}] offset:1024")
    for r in range(8): a(f"v_mov_b32 v{48+r}, v{ACC+8+r}")
    a.label("a_khj")
    a("s_waitcnt lgkmcnt(0)")
    a("s_barrier                        ; B5")
    a("ds_read_b128 v[56:59], v15")
    a("ds_read_b128 v[60:63], v15 offset:1024")
    a(f"s_mov_b32 s66, {hex(f2u(QSCALE))}")
    a("s_waitcnt lgkmcnt(0)")
    a("s_barrier                        ; B6")
    for r in range(8): a(f"v_add_f32 v{48+r}, v{48+r}, v{56+r}")
    for r in range(8): a(f"v_mul_f32 v{48+r}, s66, v{48+r}")
    for r in range(4): a(f"v_cvt_pk_bf16_f32 v{Q+r}, v{48+2*r}, v{49+2*r}")
    stamp(a, 4)
    a(f"v_add_u32 v{VKA}, {KVR}, v1")
    a(f"v_add_u32 v{VKB}, {KVR+8192}, v1")
    a("v_and_b32 v15, 15, v0")
    a("v_lshlrev_b32 v15, 4, v15")
    a("v_lshl_add_u32 v15, v3, 8, v15")
    a(f"v_add_u32 v{VVA}, {KVR+1024}, v15")
    a(f"v_add_u32 v{VVB}, {KVR+1024+8192}, v15")
    a(f"v_mov_b32 v{VLC}, {LC}")
    a(f"v_mov_b32 v{VONE}, 1")
    a(f"s_mov_b32 s{EXM}, 0xffff")
    a(f"s_mov_b32 s{EXM+1}, 0xffff")
    a("v_and_b32 v15, 27, v0")
    a("v_cmp_eq_u32 vcc, 16, v15")
    a("v_mov_b32 v15, 0x3f803f80")
    for r in range(16): a(f"v_mov_b32 v{O+r}, 0")
    a("v_cndmask_b32 v15, 0, v15, vcc")
    for r in range(8): a(f"v_mov_b32 v{P+r}, 0")
    for r in range(16): a(f"v_mov_b32 v{VB[0]+r}, v15")
    a("s_cmp_eq_u32 s8, 0")
    a("s_cbranch_scc0 a_wlds")
    a("v_lshlrev_b32 v15, 2, v0")
    a.label("a_kvpoll")
    a(f"buffer_load_dword v16, v15, s[{SDBG}:{SDBG+3}], 0 offen sc1")
    a("s_waitcnt vmcnt(0)")
    a("v_cmp_ne_u32 vcc, 1, v16")
    a("s_nop 0")
    a("s_cmp_eq_u64 vcc, 0")
    a("s_cbranch_scc1 a_kvok")
    a("s_sleep 2")
    a("s_branch a_kvpoll")
    a.label("a_kvok")
    lds_lane0(a, f"ds_write_b32 v{VLC}, v{VONE} offset:4")
    a("s_branch a_kvgo")
    a.label("a_wlds")
    a(f"ds_read_b32 v16, v{VLC} offset:4")
    a("s_waitcnt lgkmcnt(0)")
    a("v_readfirstlane_b32 s66, v16")
    a("s_nop 0")
    a("s_cmp_eq_u32 s66, 1")
    a("s_cbranch_scc1 a_kvgo")
    a("s_sleep 1")
    a("s_branch a_wlds")
    a.label("a_kvgo")
    stamp(a, 5)
    a("s_lshl_b32 s72, s8, 10")
    a(f"s_add_u32 s73, s72, {KVR}")
    for c in range(3):
        a(f"s_add_u32 m0, s73, {c*8192}")
        if c: a("s_add_u32 s72, s72, 8192")
        else: a("s_nop 0")
        a(f"buffer_load_dwordx4 v1, s[{SKV}:{SKV+3}], s72 offen sc1 lds")
    a("s_mov_b32 s74, 0x6000")
    a("s_waitcnt vmcnt(1)")
    lds_lane0(a, f"ds_add_u32 v{VLC}, v{VONE}")
    a.label("a_w0")
    a(f"ds_read_b32 v{VCNT}, v{VLC}")
    a("s_waitcnt lgkmcnt(0)")
    a(f"v_readfirstlane_b32 s70, v{VCNT}")
    a("s_nop 0")
    a("s_cmp_ge_u32 s70, 8")
    a("s_cbranch_scc0 a_w0")
    a("s_mov_b32 s71, 16")
    stamp(a, 6)
    a(f"ds_read_b128 v[{KB[0]}:{KB[0]+3}], v{VKA}")
    a(f"ds_read_b128 v[{KB[1]}:{KB[1]+3}], v{VKA} offset:2048")
    a(f"s_mov_b64 exec, s[{EXM}:{EXM+1}]")
    a(f"ds_read_b128 v[{VB[0]}:{VB[0]+3}], v{VVA}")
    a(f"ds_read_b128 v[{VB[0]+4}:{VB[0]+7}], v{VVA} offset:512")
    a("s_mov_b64 exec, -1")
    a("s_waitcnt lgkmcnt(2)")
    mfma(a, S[0], KB[0], Q, "0")
    mfma(a, S[1], KB[1], Q, "0")
    a("s_nop 7"); a("s_nop 3")
    a(f"v_max3_f32 v15, v{S[0]}, v{S[0]+1}, v{S[0]+2}")
    for i in range(3, 15, 2): a(f"v_max3_f32 v15, v15, v{S[0]+i}, v{S[0]+i+1}")
    a(f"v_max3_f32 v14, v{S[0]+15}, v{S[1]}, v{S[1]+1}")
    for i in range(2, 16, 2): a(f"v_max3_f32 v14, v14, v{S[1]+i}, v{S[1]+i+1}")
    a("v_max_f32 v15, v15, v14")
    a("v_mov_b32 v14, v15")
    a("s_nop 1")
    a("v_permlane32_swap_b32 v15, v14")
    a("s_nop 0")
    a("v_max_f32 v15, v15, v14")
    a(f"v_add_f32 v15, {hex(f2u(MOFF))}, v15")
    for r in range(16): a(f"v_sub_f32 v{NM+r}, 0, v15")
    a("s_nop 1")
    mfma(a, S[0], KB[0], Q, NM)
    a("s_mov_b32 s12, 8")
    a("s_nop 7"); a("s_nop 1")
    stamp(a, 7)
    a(".p2align 6")
    a.label("a_loop")
    for t in range(8): attn_unit(a, t)
    a("s_sub_u32 s12, s12, 1")
    a("s_cmp_lg_u32 s12, 0")
    a("s_cbranch_scc1 a_loop")
    stamp(a, 8)
    a("s_setprio 3")
    mfma(a, O, VB[1] + 4, P + 4)
    a("s_mov_b32 s13, 0")
    a.label("a_fin")
    a("s_waitcnt vmcnt(0) lgkmcnt(0)")
    a("s_nop 7"); a("s_nop 3")
    a(f"v_mul_f32 v15, 0, v{O}")
    for r in range(1, 9): a(f"v_fma_f32 v15, v{O+r}, 0, v15")
    a("v_cmp_u_f32 vcc, v15, v15")
    a("s_cmp_lg_u32 s13, 0")
    a("s_cbranch_scc1 a_norm")
    a("s_nop 1")
    a("s_cmp_lg_u64 vcc, 0")
    a("s_cbranch_scc1 a_fallback")
    a.label("a_norm")
    a(f"v_rcp_f32 v15, v{O+8}")
    a("s_lshl_b32 s66, s7, 1")
    a("s_add_u32 s66, s66, s9")
    a("s_lshl_b32 s66, s66, 5")
    a("s_lshl_b32 s67, s6, 2")
    a("s_add_u32 s66, s66, s67")
    a("s_add_u32 s66, s66, s10")
    a("s_lshl_b32 s66, s66, 10")
    a(f"s_add_u32 s66, s66, {OF_O}")
    for r in range(8): a(f"v_mul_f32 v{O+r}, v{O+r}, v15")
    for r in range(4): a(f"v_cvt_pk_bf16_f32 v{P+r}, v{O+2*r}, v{O+2*r+1}")
    a(f"buffer_store_dwordx4 v[{P}:{P+3}], v1, s[{SWS}:{SWS+3}], s66 offen sc0 sc1")
    a("s_waitcnt vmcnt(0)")
    a("s_mov_b64 exec, 1")
    a(f"ds_add_rtn_u32 v15, v{VLC}, v{VONE} offset:8")
    a("s_waitcnt lgkmcnt(0)")
    a("v_readfirstlane_b32 s66, v15")
    a("s_lshl_b32 s67, s7, 8")
    a(f"s_add_u32 s67, s67, {CN_O + 128}")
    a("s_cmp_eq_u32 s66, 7")
    a("s_cbranch_scc0 a_done")
    a("v_mov_b32 v15, 0")
    a(f"buffer_atomic_add v{VONE}, v15, s[{SWS}:{SWS+3}], s67 offen sc1")
    a.label("a_done")
    stamp(a, 9); stamp_rt(a, 11)
    a("s_mov_b64 exec, -1")
    prof_flush2(a)
    a("s_endpgm")
    a.label("a_fallback")
    a("v_mov_b32 v15, 0xff800000")
    a("s_mov_b32 s66, 0")
    a.label("a_fb1")
    a(f"buffer_load_dwordx4 v[{KB[0]}:{KB[0]+3}], v1, s[{SKV}:{SKV+3}], s66 offen sc1")
    a("s_waitcnt vmcnt(0)")
    mfma(a, S[0], KB[0], Q, "0")
    a("s_nop 7"); a("s_nop 3")
    for i in range(0, 16, 2): a(f"v_max3_f32 v15, v15, v{S[0]+i}, v{S[0]+i+1}")
    a("s_add_u32 s66, s66, 2048")
    a("s_cmp_lt_u32 s66, 0x20000")
    a("s_cbranch_scc1 a_fb1")
    a("v_mov_b32 v14, v15")
    a("s_nop 1")
    a("v_permlane32_swap_b32 v15, v14")
    a("s_nop 0")
    a("v_max_f32 v15, v15, v14")
    for r in range(16): a(f"v_sub_f32 v{NM+r}, 0, v15")
    for r in range(16): a(f"v_mov_b32 v{O+r}, 0")
    a("v_and_b32 v14, 15, v0")
    a("v_lshlrev_b32 v14, 4, v14")
    a("v_lshl_add_u32 v14, v3, 8, v14")
    a("v_add_u32 v14, 1024, v14")
    a("s_mov_b32 s66, 0")
    a.label("a_fb2")
    a(f"buffer_load_dwordx4 v[{KB[0]}:{KB[0]+3}], v1, s[{SKV}:{SKV+3}], s66 offen sc1")
    a(f"s_mov_b64 exec, s[{EXM}:{EXM+1}]")
    a(f"buffer_load_dwordx4 v[{VB[0]}:{VB[0]+3}], v14, s[{SKV}:{SKV+3}], s66 offen sc1")
    a(f"buffer_load_dwordx4 v[{VB[0]+4}:{VB[0]+7}], v14, s[{SKV}:{SKV+3}], s66 offen offset:512 sc1")
    a("s_mov_b64 exec, -1")
    a("s_waitcnt vmcnt(0)")
    mfma(a, S[0], KB[0], Q, NM)
    a("s_nop 7"); a("s_nop 3")
    for i in range(16): a(f"v_exp_f32 v{S[0]+i}, v{S[0]+i}")
    a("s_nop 0")
    for i in range(8): a(f"v_cvt_pk_bf16_f32 v{P+i}, v{S[0]+2*i}, v{S[0]+2*i+1}")
    a("s_nop 1")
    mfma(a, O, VB[0], P)
    mfma(a, O, VB[0] + 4, P + 4)
    a("s_nop 7"); a("s_nop 3")
    a("s_add_u32 s66, s66, 2048")
    a("s_cmp_lt_u32 s66, 0x20000")
    a("s_cbranch_scc1 a_fb2")
    a("s_mov_b32 s13, 1")
    a("s_branch a_fin")

def prof_flush2(a):
    import common
    if not common.PROF: return
    a("s_lshl_b32 s78, s2, 4")
    a("s_add_u32 s78, s78, s8")
    a("s_lshl_b32 s78, s78, 6")
    a(f"s_add_u32 s78, s78, {PRF_O}")
    a("s_mov_b64 exec, 1")
    a("v_mov_b32 v160, 0")
    for i in range(14):
        a(f"v_mov_b32 v161, s{80+i}")
        a(f"buffer_store_dword v161, v160, s[{SWS}:{SWS+3}], s78 offen offset:{4*i}")
    a("s_mov_b64 exec, -1")

GACC = 16; GA = [112, 124]; GB = [136, 144]; GVO = [4, 5, 6]; GVA = 7; GVB = 8; STG = 6272
GLC = 9
def g_reads(a, rs, buf, s, kso):
    for u in range(3):
        A = GA[rs] + 4 * u
        o = buf * STG + s * 1536 + u * 32
        a(f"ds_read_b64_tr_b16 v[{A}:{A+1}], v{GVA} offset:{o}")
        a(f"ds_read_b64_tr_b16 v[{A+2}:{A+3}], v{GVA} offset:{o+384}")
    for rt in range(2):
        B = GB[rs] + 4 * rt
        a(f"ds_read_b128 v[{B}:{B+3}], v{GVB} offset:{rt*32*XPITCH + kso}")
def g_mfmas(a, rs):
    for u in range(3):
        for rt in range(2):
            mfma(a, GACC + (u * 2 + rt) * 16, GA[rs] + 4 * u, GB[rs] + 4 * rt)
def g_dma(a, buf):
    for m, srd_ in ((0, SG0), (1, SG1)):
        for i in range(3):
            a(f"s_add_u32 m0, s69, {buf*STG + m*3200 + i*1024}")
            a("s_nop 0")
            a(f"buffer_load_dwordx4 v{GVO[i]}, s[{srd_}:{srd_+3}], s68 offen lds")
    a(f"s_add_u32 s68, s68, {32*2752}")

DACC = 16; DBR = 80; DAF = [128, 136]; NS = 22; DEPTH = 6
def down_issue(a, s):
    slot = s % DEPTH
    for i in range(2):
        a(f"s_add_u32 m0, s69, {slot*2048 + i*1024}")
        a("s_nop 0")
        a(f"buffer_load_dwordx4 v4, s[{SG0}:{SG0+3}], s68 offen lds")
        a("s_add_u32 s68, s68, 8192")
    for rt in range(2):
        B = DBR + slot * 8 + rt * 4
        srd_ = (SG1, SG2)[rt]
        a(f"buffer_load_dwordx4 v[{B}:{B+3}], v1, s[{srd_}:{srd_+3}], s70 offen sc1")
    a("s_add_u32 s70, s70, 1024")
def a_reads(a, A0, v0reg, v1reg, off):
    for ct, vr_ in ((0, v0reg), (1, v1reg)):
        A = A0 + 4 * ct
        a(f"ds_read_b64_tr_b16 v[{A}:{A+1}], v{vr_} offset:{off}")
        a(f"ds_read_b64_tr_b16 v[{A+2}:{A+3}], v{vr_} offset:{off+1024}")

def sgpr_select4(a, dst, vals):
    a(f"s_mov_b32 s{dst}, {vals[0]}")
    for g in range(1, 4):
        a(f"s_cmp_eq_u32 s9, {g}")
        a(f"s_cselect_b32 s{dst}, {vals[g]}, s{dst}")

def gen_g(a):
    a("s_sub_u32 s9, s8, 8              ; g")
    a("s_lshl_b32 s66, s7, 6")
    a("s_lshl_b32 s67, s9, 2")
    a("s_add_u32 s66, s66, s67")
    a("s_add_u32 s66, s66, 48")
    a("s_lshl_b32 s66, s66, 10")
    a(f"s_mul_i32 s67, s9, {4*XPITCH}")
    a(f"s_add_u32 s67, s67, {XR + 48*XPITCH}")
    dma_loop(a, "gx", 4, 1, SG0, 66, 67, 1024, XPITCH)
    a("s_lshl_b32 s66, s9, 16")
    a("s_add_u32 s66, s66, 0x40000")
    a("s_lshl_b32 s68, s6, 7")
    a("s_add_u32 s66, s66, s68")
    a("s_lshl_b32 s67, s9, 13")
    a(f"s_add_u32 s67, s67, {WQ + 32*1024}")
    dma_loop(a, "gq", 8, 4, SG1, 66, 67, 8192, 1024)
    a("s_lshl_b32 s66, s9, 12")
    a(f"s_add_u32 s67, s66, {WKV}")
    a("s_mov_b32 m0, s67")
    a("s_cmp_ge_u32 s6, 2")
    a("s_cbranch_scc1 g_nokv")
    for i in range(4):
        a(f"buffer_load_dwordx4 v1, s[{SG2}:{SG2+3}], s66 offen offset:{i*1024} lds")
    a("s_waitcnt vmcnt(12)")
    a("s_branch g_kvj")
    a.label("g_nokv")
    a("s_waitcnt vmcnt(8)")
    a.label("g_kvj")
    a(f"v_mov_b32 v{GLC}, {LC}")
    a("s_cmp_eq_u32 s9, 0")
    a("s_cbranch_scc0 g_nz")
    a("v_mov_b32 v10, 0")
    a("v_mov_b32 v11, 0")
    a("v_mov_b32 v12, 0")
    a("v_mov_b32 v13, 0")
    lds_lane0(a, f"ds_write_b128 v{GLC}, v[10:13]")
    a("s_waitcnt lgkmcnt(0)")
    a.label("g_nz")
    stamp(a, 1)
    a("s_barrier                        ; B1")
    a("s_barrier                        ; B2")
    a("s_waitcnt vmcnt(0)")
    a("s_barrier                        ; B3")
    stamp(a, 2)
    a("s_cmp_ge_u32 s6, 2")
    a("s_cbranch_scc1 g_skipkv")
    a("s_and_b32 s10, s9, 1             ; rt")
    a("s_lshr_b32 s11, s9, 1            ; kh")
    a("v_bfe_u32 v20, v0, 2, 2")
    a("v_and_b32 v21, 3, v0")
    a("v_lshlrev_b32 v23, 8, v3")
    a("v_lshl_add_u32 v23, v20, 5, v23")
    a("v_lshl_add_u32 v23, v21, 3, v23")
    a("s_lshl_b32 s66, s11, 13")
    a(f"s_add_u32 s66, s66, {WKV}")
    a("v_add_u32 v23, s66, v23")
    a(f"v_mul_u32_u24 v7, {XPITCH}, v2")
    a("v_lshl_add_u32 v7, v3, 4, v7")
    a(f"s_mul_i32 s66, s10, {32*XPITCH}")
    a("s_lshl_b32 s67, s11, 9")
    a("s_add_u32 s66, s66, s67")
    a(f"s_add_u32 s66, s66, {XR}")
    a("v_add_u32 v24, s66, v7")
    ACC = 64
    def kvld(s):
        A = 80 + 8 * (s % 4)
        a(f"ds_read_b64_tr_b16 v[{A}:{A+1}], v23 offset:{s*512}")
        a(f"ds_read_b64_tr_b16 v[{A+2}:{A+3}], v23 offset:{s*512+128}")
        a(f"ds_read_b128 v[{A+4}:{A+7}], v24 offset:{s*32}")
    for chain in range(2):
        if chain == 0:
            a("s_cmp_eq_u32 s6, 1")
            a("s_cbranch_scc1 g_vchain")
        else:
            a.label("g_vchain")
        kvld(0); kvld(1); kvld(2)
        for s in range(16):
            if s + 3 < 16: kvld(s + 3); a("s_waitcnt lgkmcnt(9)")
            else: a(f"s_waitcnt lgkmcnt({3*(15-s)})")
            A = 80 + 8 * (s % 4)
            if chain == 0: mfma(a, ACC, A, A + 4, "0" if s == 0 else None)
            else: mfma(a, ACC, A + 4, A, "0" if s == 0 else None)
        if chain == 0: a("s_branch g_kvdone")
    a.label("g_kvdone")
    a("s_barrier                        ; B4")
    a("s_lshl_b32 s66, s9, 12")
    a(f"s_add_u32 s66, s66, {KRED - 4096}")
    a("v_add_u32 v14, s66, v1")
    a("s_nop 6")
    a("s_cmp_eq_u32 s9, 0")
    a("s_cbranch_scc1 g_kvw0")
    for q in range(4): a(f"ds_write_b128 v14, v[{ACC+4*q}:{ACC+4*q+3}] offset:{q*1024}")
    a("s_waitcnt lgkmcnt(0)")
    a("s_barrier                        ; B5")
    a("s_barrier                        ; B6")
    a("s_branch g_gateup")
    a.label("g_kvw0")
    a("s_barrier                        ; B5")
    a(f"v_add_u32 v14, {KRED}, v1")
    for g in range(3):
        for q in range(4):
            a(f"ds_read_b128 v[{80+16*g+4*q}:{83+16*g+4*q}], v14 offset:{g*4096+q*1024}")
    a("s_waitcnt lgkmcnt(0)")
    a("s_barrier                        ; B6")
    for r in range(16):
        a(f"v_add_f32 v{ACC+r}, v{ACC+r}, v{96+r}")
        a(f"v_add_f32 v{80+r}, v{80+r}, v{112+r}")
    for r in range(8):
        a(f"v_cvt_pk_bf16_f32 v{48+r}, v{ACC+2*r}, v{ACC+2*r+1}")
        a(f"v_cvt_pk_bf16_f32 v{56+r}, v{80+2*r}, v{81+2*r}")
    a("s_lshl_b32 s66, s7, 12            ; tile 2c * 2048")
    a("s_cmp_eq_u32 s6, 1")
    a("s_cbranch_scc1 g_vst")
    a(f"buffer_store_dwordx4 v[48:51], v1, s[{SKV}:{SKV+3}], s66 offen sc0 sc1")
    a(f"buffer_store_dwordx4 v[56:59], v1, s[{SKV}:{SKV+3}], s66 offen offset:2048 sc0 sc1")
    a("s_lshl_b32 s67, s7, 8")
    a(f"s_add_u32 s67, s67, {CN_O}")
    a("v_mov_b32 v14, 0")
    a("v_lshlrev_b32 v15, 2, v0")
    a(f"buffer_store_dword v14, v15, s[{SWS}:{SWS+3}], s67 offen sc0 sc1")
    a("s_branch g_kvflag")
    a.label("g_vst")
    a("v_lshlrev_b32 v14, 8, v3")
    a("v_lshl_add_u32 v14, v2, 4, v14")
    a("v_mov_b32 v15, 0x40000000")
    a("v_cmp_gt_u32 vcc, 16, v2")
    a("s_add_u32 s66, s66, 1024")
    a("s_nop 1")
    a("v_cndmask_b32 v14, v15, v14, vcc")
    a(f"buffer_store_dwordx4 v[48:51], v14, s[{SKV}:{SKV+3}], s66 offen sc0 sc1")
    a(f"buffer_store_dwordx4 v[52:55], v14, s[{SKV}:{SKV+3}], s66 offen offset:512 sc0 sc1")
    a(f"buffer_store_dwordx4 v[56:59], v14, s[{SKV}:{SKV+3}], s66 offen offset:2048 sc0 sc1")
    a(f"buffer_store_dwordx4 v[60:63], v14, s[{SKV}:{SKV+3}], s66 offen offset:2560 sc0 sc1")
    a.label("g_kvflag")
    a("s_waitcnt vmcnt(0)")
    a("s_lshl_b32 s66, s7, 1")
    a("s_add_u32 s66, s66, s6")
    a("s_lshl_b32 s66, s66, 2")
    a("v_mov_b32 v14, 0")
    a("v_mov_b32 v15, 1")
    lds_lane0(a, f"buffer_store_dword v15, v14, s[{SDBG}:{SDBG+3}], s66 offen sc0 sc1")
    a("s_branch g_gateup")
    a.label("g_skipkv")
    a("s_barrier                        ; B4")
    a("s_barrier                        ; B5")
    a("s_barrier                        ; B6")
    a.label("g_gateup")
    stamp(a, 3)
    srd(a, SG0, P_W1, 512 * 2752)
    srd(a, SG1, P_W3, 512 * 2752)
    a("s_lshl_b32 s10, s6, 2")
    a("s_add_u32 s10, s10, s9           ; gw")
    sgpr_select4(a, 69, GS)
    a("s_mov_b32 s14, 0")
    a("s_cmp_gt_u32 s10, 28")
    a("s_cbranch_scc1 g_after_h")
    for i in range(3):
        a(f"v_add_u32 v10, {64*i}, v0")
        a("v_mul_u32_u24 v11, 43691, v10")
        a("v_lshrrev_b32 v11, 18, v11")
        a("v_mul_u32_u24 v12, 6, v11")
        a("v_sub_u32 v12, v10, v12")
        a("v_mul_u32_u24 v11, 2752, v11")
        a(f"v_lshl_add_u32 v{GVO[i]}, v12, 4, v11")
    a("s_mul_i32 s68, s10, 96")
    g_dma(a, 0); g_dma(a, 1)
    a("v_bfe_u32 v10, v0, 2, 2")
    a("v_lshl_add_u32 v10, v3, 3, v10")
    a("v_mul_u32_u24 v10, 96, v10")
    a("v_and_b32 v11, 3, v0")
    a("v_lshl_add_u32 v10, v11, 3, v10")
    a("v_bfe_u32 v11, v0, 4, 1")
    a("v_mul_u32_u24 v11, 3200, v11")
    a("v_add_u32 v10, v10, v11")
    a(f"v_add_u32 v{GVA}, s69, v10")
    a(f"v_mul_u32_u24 v{GVB}, {XPITCH}, v2")
    a(f"v_lshl_add_u32 v{GVB}, v3, 4, v{GVB}")
    a(f"v_add_u32 v{GVB}, {XR}, v{GVB}")
    for r in range(96): a(f"v_mov_b32 v{GACC+r}, 0")
    a("s_waitcnt vmcnt(6)")
    g_reads(a, 0, 0, 0, 0)
    a("s_mov_b32 s12, 8")
    a.label("g_loop")
    for buf in range(2):
        kso = 64 * buf
        g_reads(a, 1, buf, 1, kso + 32)
        a("s_waitcnt lgkmcnt(8)")
        g_mfmas(a, 0)
        a("s_waitcnt vmcnt(0) lgkmcnt(0)")
        g_dma(a, buf)
        g_reads(a, 0, 1 - buf, 0, kso + 64)
        g_mfmas(a, 1)
    a(f"v_add_u32 v{GVB}, 128, v{GVB}")
    a("s_sub_u32 s12, s12, 1")
    a("s_cmp_lg_u32 s12, 0")
    a("s_cbranch_scc1 g_loop")
    stamp(a, 4)
    a("s_setprio 3")
    a("s_waitcnt vmcnt(0) lgkmcnt(0)")
    a("s_nop 7"); a("s_nop 3")
    a(f"s_mov_b32 s66, {hex(f2u(-1.4426950408889634))}")
    a("s_mov_b32 s67, s66")
    a("s_mov_b32 s72, 1.0")
    a("s_mov_b32 s73, 1.0")
    a(f"s_mul_i32 s70, s7, {2*NF}")
    a("s_mul_i32 s71, s10, 3")
    a("s_add_u32 s70, s70, s71")
    a("s_lshl_b32 s70, s70, 10")
    a(f"s_add_u32 s70, s70, {HF_O}")
    T = 112
    for u in range(3):
        if u == 2:
            a("s_cmp_eq_u32 s10, 28")
            a("s_cbranch_scc1 g_hdone")
        for rt in range(2):
            A = GACC + (u * 2 + rt) * 16
            for i in range(0, 8, 2): a(f"v_pk_mul_f32 v[{T+i}:{T+i+1}], v[{A+i}:{A+i+1}], s[66:67]")
            for i in range(8): a(f"v_exp_f32 v{T+i}, v{T+i}")
            for i in range(0, 8, 2): a(f"v_pk_mul_f32 v[{A+i}:{A+i+1}], v[{A+i}:{A+i+1}], v[{A+8+i}:{A+9+i}]")
            for i in range(0, 8, 2): a(f"v_pk_add_f32 v[{T+i}:{T+i+1}], v[{T+i}:{T+i+1}], s[72:73]")
            for i in range(8): a(f"v_rcp_f32 v{T+i}, v{T+i}")
            a("s_nop 0")
            for i in range(0, 8, 2): a(f"v_pk_mul_f32 v[{A+i}:{A+i+1}], v[{A+i}:{A+i+1}], v[{T+i}:{T+i+1}]")
            D = 120 + 4 * ((u * 2 + rt) & 1)
            for i in range(4): a(f"v_cvt_pk_bf16_f32 v{D+i}, v{A+2*i}, v{A+2*i+1}")
            a(f"s_add_u32 s71, s70, {(rt*NF + u)*1024}")
            a(f"buffer_store_dwordx4 v[{D}:{D+3}], v1, s[{SWS}:{SWS+3}], s71 offen sc0 sc1")
    a.label("g_hdone")
    a("s_setprio 0")
    a("s_lshl_b32 s70, s7, 3")
    a("v_mov_b32 v10, 0")
    poll_word(a, "kf", 10, 11, 70, 1, SDBG)
    a("s_lshl_b32 s70, s7, 8")
    a(f"s_add_u32 s70, s70, {CN_O}")
    a("v_mov_b32 v11, 1")
    lds_lane0(a, f"buffer_atomic_add v11, v10, s[{SWS}:{SWS+3}], s70 offen sc1")
    a.label("g_after_h")
    a("s_lshl_b32 s70, s7, 3")
    a("v_mov_b32 v10, 0")
    poll_word(a, "kf2", 10, 11, 70, 1, SDBG)
    stamp(a, 5)
    gsync(a, "x", GLC, 10, 14)
    srd(a, SG0, P_WO, 512 * 1024)
    lane_dma128(a, 4, 10)
    lane_tr_perm(a, 7, 10)
    a("s_lshl_b32 s66, s9, 17")
    a("s_lshl_b32 s67, s6, 7")
    a("s_add_u32 s66, s66, s67")
    a("s_lshl_b32 s67, s9, 14")
    a(f"s_add_u32 s67, s67, {WO}")
    dma_loop(a, "wo", 16, 4, SG0, 66, 67, 8192, 1024)
    srd(a, SG0, P_W2, 1376 * 1024)
    a(f"s_mul_i32 s66, s7, {2*NF*1024}")
    a(f"s_add_u32 s66, s66, {HF_O}")
    a(f"s_add_u32 s{SG1}, s{P_WS}, s66")
    a(f"s_addc_u32 s{SG1+1}, s{P_WS+1}, 0")
    a(f"s_mov_b32 s{SG1+2}, {NF*1024}")
    a(f"s_mov_b32 s{SG1+3}, 0x20000")
    a(f"s_add_u32 s{SG2}, s{SG1}, {NF*1024}")
    a(f"s_addc_u32 s{SG2+1}, s{SG1+1}, 0")
    a(f"s_mov_b32 s{SG2+2}, {NF*1024}")
    a(f"s_mov_b32 s{SG2+3}, 0x20000")
    a(f"s_mul_i32 s68, s9, {NS*16*1024}")
    a("s_lshl_b32 s66, s6, 7")
    a("s_add_u32 s68, s68, s66           ; W2 soffset")
    a("v_add_u32 v5, s69, v7")
    a("v_xor_b32 v6, 64, v5")
    a("s_lshl_b32 s70, s7, 8")
    a(f"s_add_u32 s70, s70, {CN_O}")
    a("v_mov_b32 v10, 0")
    poll_word(a, "h", 10, 11, 70, 29, SWS)
    a(f"s_mul_i32 s70, s9, {NS*1024}     ; h soffset")
    stamp(a, 6)
    for s in range(DEPTH): down_issue(a, s)
    a(f"s_waitcnt vmcnt({4*(DEPTH-1)})")
    a_reads(a, DAF[0], 5, 6, 0)
    for s in range(NS):
        if s + 1 < NS:
            issued = min(NS, s + DEPTH)
            a(f"s_waitcnt vmcnt({4*(issued-(s+2))})")
            a_reads(a, DAF[(s + 1) % 2], 5, 6, ((s + 1) % DEPTH) * 2048)
            a("s_waitcnt lgkmcnt(4)")
        else:
            a("s_waitcnt lgkmcnt(0)")
        slot = s % DEPTH
        for ct in range(2):
            for rt in range(2):
                mfma(a, DACC + (ct * 2 + rt) * 16, DAF[s % 2] + 4 * ct, DBR + slot * 8 + rt * 4, "0" if s == 0 else None)
        if s + DEPTH < NS: down_issue(a, s + DEPTH)
    stamp(a, 7)
    a("s_setprio 3")
    gsync(a, "r0", GLC, 10, 14)
    for ct in range(2):
        for rt in range(2):
            owner = 2 * rt + ct
            T = DACC + (ct * 2 + rt) * 16
            a(f"s_cmp_eq_u32 s9, {owner}")
            a(f"s_cbranch_scc1 g_skipw{owner}")
            a(f"s_sub_u32 s66, s9, {owner+1}")
            a("s_and_b32 s66, s66, 3")
            a("s_lshl_b32 s66, s66, 12")
            a(f"s_add_u32 s66, s66, {RED[owner]}")
            a("v_add_u32 v10, s66, v1")
            for q in range(4): a(f"ds_write_b128 v10, v[{T+4*q}:{T+4*q+3}] offset:{q*1024}")
            a.label(f"g_skipw{owner}")
    for owner in range(4):
        ct, rt = owner & 1, owner >> 1
        T = DACC + (ct * 2 + rt) * 16
        a(f"s_cmp_eq_u32 s9, {owner}")
        a(f"s_cbranch_scc0 g_nmv{owner}")
        for r in range(16): a(f"v_mov_b32 v{152+r}, v{T+r}")
        a.label(f"g_nmv{owner}")
    gsync(a, "r1", GLC, 10, 14)
    sgpr_select4(a, 68, RED)
    a("v_add_u32 v10, s68, v1")
    for p in range(3):
        for q in range(4):
            a(f"ds_read_b128 v[{16+16*p+4*q}:{19+16*p+4*q}], v10 offset:{p*4096+q*1024}")
    a("s_waitcnt lgkmcnt(0)")
    for r in range(16):
        a(f"v_add_f32 v{152+r}, v{152+r}, v{16+r}")
        a(f"v_add_f32 v{32+r}, v{32+r}, v{48+r}")
    for r in range(16): a(f"v_add_f32 v{152+r}, v{152+r}, v{32+r}")
    a(f"s_mov_b32 s66, {hex(f2u(-1.4426950408889634))}")
    a("s_mov_b32 s67, s66")
    a("s_mov_b32 s72, 1.0")
    a("s_mov_b32 s73, 1.0")
    for i in range(0, 16, 2): a(f"v_pk_mul_f32 v[{16+i}:{17+i}], v[{152+i}:{153+i}], s[66:67]")
    for i in range(16): a(f"v_exp_f32 v{16+i}, v{16+i}")
    a("s_nop 0")
    for i in range(0, 16, 2): a(f"v_pk_add_f32 v[{16+i}:{17+i}], v[{16+i}:{17+i}], s[72:73]")
    for i in range(16): a(f"v_rcp_f32 v{16+i}, v{16+i}")
    a("s_nop 0")
    for i in range(0, 16, 2): a(f"v_pk_mul_f32 v[{152+i}:{153+i}], v[{152+i}:{153+i}], v[{16+i}:{17+i}]")
    a("s_setprio 0")
    srd(a, SG0, P_X, 2048 * 1024)
    srd(a, SG1, P_OUT, 2048 * 1024)
    a("s_lshr_b32 s10, s9, 1            ; rt")
    a("s_and_b32 s11, s9, 1")
    a("v_lshlrev_b32 v8, 10, v2")
    a("v_lshl_add_u32 v8, v3, 3, v8")
    a("s_lshl_b32 s74, s7, 6")
    a("s_lshl_b32 s66, s10, 5")
    a("s_add_u32 s74, s74, s66")
    a("s_lshl_b32 s74, s74, 10")
    a("s_lshl_b32 s66, s6, 7")
    a("s_add_u32 s74, s74, s66")
    a("s_lshl_b32 s66, s11, 6")
    a("s_add_u32 s74, s74, s66")
    for q in range(4):
        a(f"buffer_load_dwordx2 v[{144+2*q}:{145+2*q}], v8, s[{SG0}:{SG0+3}], s74 offen offset:{q*16}")
    a("s_lshl_b32 s66, s11, 15")
    a(f"s_add_u32 s66, s66, {WO}")
    a("v_add_u32 v5, s66, v7")
    a("v_xor_b32 v6, 64, v5")
    gsync(a, "r2", GLC, 10, 14)
    stamp(a, 8)
    a("s_lshl_b32 s70, s7, 8")
    a(f"s_add_u32 s70, s70, {CN_O + 128}")
    a("v_mov_b32 v10, 0")
    poll_word(a, "o", 10, 11, 70, 8, SWS)
    stamp(a, 9)
    a("s_lshl_b32 s66, s7, 1")
    a("s_add_u32 s66, s66, s10")
    a("s_lshl_b32 s66, s66, 5")
    a("s_lshl_b32 s67, s11, 4")
    a("s_add_u32 s66, s66, s67")
    a("s_lshl_b32 s66, s66, 10")
    a(f"s_add_u32 s66, s66, {OF_O}")
    for i in range(16):
        a(f"buffer_load_dwordx4 v[{80+4*i}:{83+4*i}], v1, s[{SWS}:{SWS+3}], s66 offen offset:{(i%4)*1024} sc1")
        if i % 4 == 3: a("s_add_u32 s66, s66, 4096")
    OA = [16, 32]; AF = [48, 56]
    a_reads(a, AF[0], 5, 6, 0)
    for i in range(16):
        if i + 1 < 16:
            a_reads(a, AF[(i + 1) % 2], 5, 6, (i + 1) * 2048)
            a(f"s_waitcnt vmcnt({15-i}) lgkmcnt(4)")
        else: a("s_waitcnt vmcnt(0) lgkmcnt(0)")
        for ct in range(2):
            mfma(a, OA[ct], AF[i % 2] + 4 * ct, 80 + 4 * i, "0" if i == 0 else None)
    sgpr_select4(a, 68, EX)
    a("v_add_u32 v9, s68, v1")
    a("s_xor_b32 s9, s9, 1")
    sgpr_select4(a, 69, EX)
    a("s_xor_b32 s9, s9, 1")
    a("v_add_u32 v10, s69, v1")
    a("s_cmp_eq_u32 s11, 0")
    a("s_cbranch_scc0 g_ex1")
    for q in range(4): a(f"ds_write_b128 v9, v[{OA[1]+4*q}:{OA[1]+4*q+3}] offset:{q*1024}")
    a("s_branch g_exj")
    a.label("g_ex1")
    for q in range(4): a(f"ds_write_b128 v9, v[{OA[0]+4*q}:{OA[0]+4*q+3}] offset:{q*1024}")
    for r in range(16): a(f"v_mov_b32 v{OA[0]+r}, v{OA[1]+r}")
    a.label("g_exj")
    a("s_waitcnt lgkmcnt(0)")
    a("s_barrier")
    for q in range(4): a(f"ds_read_b128 v[{32+4*q}:{35+4*q}], v10 offset:{q*1024}")
    a("v_mov_b32 v11, 0xffff0000")
    a("s_waitcnt lgkmcnt(0)")
    for r in range(16): a(f"v_add_f32 v{16+r}, v{16+r}, v{32+r}")
    for q in range(4):
        for i in range(2):
            x = 144 + 2 * q + i
            r = 4 * q + 2 * i
            a(f"v_lshlrev_b32 v48, 16, v{x}")
            a(f"v_and_b32 v49, v11, v{x}")
            a(f"v_fma_f32 v48, v{16+r}, v{152+r}, v48")
            a(f"v_fma_f32 v49, v{16+r+1}, v{152+r+1}, v49")
            a(f"v_cvt_pk_bf16_f32 v{x}, v48, v49")
        a(f"buffer_store_dwordx2 v[{144+2*q}:{145+2*q}], v8, s[{SG1}:{SG1+3}], s74 offen offset:{q*16}")
    stamp(a, 10); stamp_rt(a, 11)
    prof_flush2(a)
    a("s_endpgm")

def gen_fused(a):
    name = NAME
    a(".p2align 8")
    a(f".type {name},@function")
    a.label(name)
    a("s_cmp_ge_u32 s2, 256")
    a("s_cbranch_scc1 k_exit")
    a("s_load_dwordx16 s[16:31], s[0:1], 0")
    a("s_load_dwordx8 s[32:39], s[0:1], 64")
    stamp_rt(a, 12)
    a("s_and_b32 s4, s2, 7")
    a("s_lshr_b32 s5, s2, 3")
    a("s_and_b32 s5, s5, 3")
    a("s_lshr_b32 s6, s2, 5          ; member j")
    a("s_lshl_b32 s7, s4, 2")
    a("s_add_u32 s7, s7, s5          ; cluster c")
    a("v_lshrrev_b32 v1, 6, v0")
    a("v_and_b32 v0, 63, v0          ; lane")
    a("v_readfirstlane_b32 s8, v1")
    a("v_lshlrev_b32 v1, 4, v0       ; lane*16")
    a("v_and_b32 v2, 31, v0            ; n")
    a("v_lshrrev_b32 v3, 5, v0         ; h")
    if os.environ.get("CODEPF", "1") == "1":
        a("s_cmp_ge_u32 s8, 8")
        a("s_cbranch_scc0 k_nopf")
        a("s_getpc_b64 s[66:67]")
        a.label("k_pcref")
        a("s_sub_u32 s68, s8, 8")
        a("s_lshl_b32 s68, s68, 13")
        a("v_lshlrev_b32 v10, 7, v0")
        a("v_add_u32 v10, s68, v10")
        a("v_mov_b32 v13, s67")
        a("v_add_co_u32 v12, vcc, s66, v10")
        a("s_mov_b32 s68, k_end - k_pcref")
        a("s_nop 0")
        a("v_addc_co_u32 v13, vcc, 0, v13, vcc")
        a("v_cmp_gt_u32 vcc, s68, v10")
        a("s_nop 0")
        a("s_and_saveexec_b64 s[70:71], vcc")
        a("s_cbranch_execz k_pfj")
        a("global_load_dword v14, v[12:13], off")
        a.label("k_pfj")
        a("s_mov_b64 exec, -1")
        a.label("k_nopf")
    lane_dma128(a, 4, 10)
    a("s_waitcnt lgkmcnt(0)")
    stamp(a, 0); stamp_rt(a, 10)
    srd(a, SG0, P_X, 2048 * 1024)
    srd(a, SG1, P_WQ, 512 * 1024)
    srd(a, SWS, P_WS, WS_SZ)
    a(f"s_add_u32 s{SKV}, s{P_WS}, {KV_O}")
    a(f"s_addc_u32 s{SKV+1}, s{P_WS+1}, 0")
    a(f"s_mov_b32 s{SKV+2}, 0x20000")
    a(f"s_mov_b32 s{SKV+3}, 0x20000")
    srd(a, SDBG, P_DBG, 256)
    a("s_cmp_eq_u32 s6, 1")
    a(f"s_cselect_b32 s{SG2}, s{P_WV}, s{P_WK}")
    a(f"s_cselect_b32 s{SG2+1}, s{P_WV+1}, s{P_WK+1}")
    a(f"s_mov_b32 s{SG2+2}, 16384")
    a(f"s_mov_b32 s{SG2+3}, 0x20000")
    a("s_cmp_ge_u32 s8, 8")
    a("s_cbranch_scc1 k_g")
    gen_a(a)
    a.label("k_g")
    gen_g(a)
    a.label("k_exit")
    a("s_endpgm")
    a.label("k_end")
    return name, 168, LDS_SIZE, 768
```

```python
import sys, common
from common import *
import fused
def build(path):
    hdr = open("recurrent_scan__grouped_kv_mqa__glu_gated_swiglu__prompt.s.ref").read().split("\n")
    lead = []
    for l in hdr:
        if not l.startswith(";"): break
        if "@launch" in l: continue
        lead.append(l)
    body = Asm()
    name, nv, lds, block = fused.gen_fused(body)
    errs = check(body.lines)
    for e in errs: print(e)
    n = sum(1 for l in body.lines if not l.startswith(';') and not l.endswith(':') and not l.startswith('.'))
    print(f"hazard check: {len(errs)} problems; {n} instructions")
    out = "\n".join(lead) + f"\n; @launch grid=(256,1,1) block=({block},1,1) lds={lds}\n"
    out += f'.amdgcn_target "amdgcn-amd-amdhsa--gfx950"\n.text\n.globl {name}\n'
    out += body.text()
    out += '.section .rodata,"a"\n.p2align 6\n' + descriptor(name, nv, 100)
    open(path, "w").write(out)
if __name__ == "__main__":
    if len(sys.argv) > 1 and sys.argv[1] == 'prof': common.PROF = True
    build(sys.argv[2] if len(sys.argv) > 2 else "out_f.s")
```

```python
import os
from common import *

NAME = "recurrent_scan__grouped_kv_mqa__glu_gated_swiglu__prompt_kernel"
KVR = 0
WQ = 0
QX = 32768
KRED = 49152
XR = 65536
WKV = 132096
ST = 148480
GSZ = 12800
GS = [32768, 32768 + GSZ, 132096, 132096 + GSZ]
WO = XR
RED = [32768, 32768 + 12288, 132096, 132096 + 12288]
EX = [32768, 32768 + 4096, 132096, 132096 + 4096]
LC = 157696
LDS_SIZE = LC + 64
KV_O = 0x000000
KVF_O = 0x020000
CN_O = 0x024000
EP_O = 0x030000
HF_O = 0x100000
OF_O = 0x700000
WS_SZ = 0xA00000
PRF_O = 0x900000
NF = 86
MOFF = 80.0

SWS, SKV, SG0, SG1, SG2, SDBG = 40, 44, 48, 52, 56, 60
EXM = 64

def lds_lane0(a, ins):
    a("s_mov_b64 exec, 1"); a(ins); a("s_mov_b64 exec, -1")

def gsync(a, tag, vaddr, vtmp, starget):
    a("s_waitcnt lgkmcnt(0)")
    a(f"s_add_u32 s{starget}, s{starget}, 4")
    a("s_mov_b64 exec, 1")
    a(f"v_mov_b32 v{vtmp}, 1")
    a(f"ds_add_u32 v{vaddr}, v{vtmp} offset:12")
    a("s_mov_b64 exec, -1")
    a.label(f"gs_{tag}")
    a(f"ds_read_b32 v{vtmp}, v{vaddr} offset:12")
    a("s_waitcnt lgkmcnt(0)")
    a(f"v_readfirstlane_b32 s66, v{vtmp}")
    a("s_nop 0")
    a(f"s_cmp_ge_u32 s66, s{starget}")
    a(f"s_cbranch_scc1 gs_{tag}_ok")
    a("s_sleep 1")
    a(f"s_branch gs_{tag}")
    a.label(f"gs_{tag}_ok")

def poll_flags(a, tag, voff, vtmp, soff, nlanes, sleep=4):
    m = (1 << nlanes) - 1
    a.label(f"pf_{tag}")
    a(f"buffer_load_dword v{vtmp}, v{voff}, s[{SWS}:{SWS+3}], s{soff} offen sc1")
    a("s_waitcnt vmcnt(0)")
    a(f"v_cmp_ne_u32 vcc, s15, v{vtmp}")
    a("s_nop 0")
    if nlanes < 64:
        if nlanes <= 32:
            a(f"s_and_b32 s66, vcc_lo, {hex(m)}")
            a("s_cmp_eq_u32 s66, 0")
    else:
        a("s_cmp_eq_u64 vcc, 0")
    a(f"s_cbranch_scc1 pf_{tag}_ok")
    a(f"s_sleep {sleep}")
    a(f"s_branch pf_{tag}")
    a.label(f"pf_{tag}_ok")

def poll_word(a, tag, voff, vtmp, soff, target, srd_):
    a.label(f"pw_{tag}")
    a(f"buffer_load_dword v{vtmp}, v{voff}, s[{srd_}:{srd_+3}], s{soff} offen sc1")
    a("s_waitcnt vmcnt(0)")
    a(f"v_readfirstlane_b32 s66, v{vtmp}")
    a("s_nop 0")
    a(f"s_cmp_ge_u32 s66, {target}")
    a(f"s_cbranch_scc1 pw_{tag}_ok")
    a("s_sleep 4")
    a(f"s_branch pw_{tag}")
    a.label(f"pw_{tag}_ok")

Q = 4; VKA = 8; VKB = 9; VVA = 10; VVB = 11; VLC = 12; VONE = 13; VCNT = 14
S = [16, 32]; P = 48; O = 56; NM = 72; KB = [88, 92]; VB = [96, 104]

def attn_unit(a, t):
    p = t & 1
    Sc, Sn = S[p], S[1 - p]
    E = [f"v_exp_f32 v{Sc+i}, v{Sc+i}" for i in range(16)]
    C = [f"v_cvt_pk_bf16_f32 v{P+i}, v{Sc+2*i}, v{Sc+2*i+1}" for i in range(8)]
    Vprev = VB[(t - 1) & 1]; Vc = VB[t & 1]; Vn = VB[(t + 1) & 1]
    a(f"s_setprio {3 - (t % 4)}")
    a("s_waitcnt lgkmcnt(0)")
    if t % 4 == 0:
        a("s_waitcnt vmcnt(1)")
        lds_lane0(a, f"ds_add_u32 v{VLC}, v{VONE}")
    a(E[0])
    if t % 4 == 2: a(f"v_readfirstlane_b32 s70, v{VCNT}")
    mfma(a, O, Vprev + 4, P + 4)
    a(E[1])
    if t % 4 == 2:
        a("s_cmp_ge_u32 s70, s71")
        a(f"s_cbranch_scc1 a_ok{t}")
        a.label(f"a_spin{t}")
        a("s_sleep 1")
        a(f"ds_read_b32 v{VCNT}, v{VLC}")
        a("s_waitcnt lgkmcnt(0)")
        a(f"v_readfirstlane_b32 s70, v{VCNT}")
        a("s_nop 0")
        a("s_cmp_ge_u32 s70, s71")
        a(f"s_cbranch_scc0 a_spin{t}")
        a.label(f"a_ok{t}")
        a("s_add_u32 s71, s71, 8")
        a("s_add_u32 m0, s73, s74")
        a("s_add_u32 s72, s72, 8192")
        a(f"buffer_load_dwordx4 v1, s[{SKV}:{SKV+3}], s72 offen sc1 lds")
        a("s_add_u32 s74, s74, 8192")
        a("s_and_b32 s74, s74, 0x7fff")
    for i in range(2, 5): a(E[i])
    mfma(a, Sn, KB[(t + 1) & 1], Q, NM)
    tv = t + 1; tk = t + 2
    vreg = VVA if (tv < 4 or tv >= 8) else VVB
    kreg = VKA if (tk < 4 or tk >= 8) else VKB
    a(f"s_mov_b64 exec, s[{EXM}:{EXM+1}]")
    a(f"ds_read_b128 v[{Vn}:{Vn+3}], v{vreg} offset:{(tv%4)*2048}")
    a(f"ds_read_b128 v[{Vn+4}:{Vn+7}], v{vreg} offset:{(tv%4)*2048+512}")
    a("s_mov_b64 exec, -1")
    Kl = KB[t & 1]
    a(f"ds_read_b128 v[{Kl}:{Kl+3}], v{kreg} offset:{(tk%4)*2048}")
    if t % 4 == 1: a(f"ds_read_b32 v{VCNT}, v{VLC}")
    if t == 1: a(f"v_xor_b32 v{VKA}, 16384, v{VKA}")
    if t == 2: a(f"v_xor_b32 v{VVA}, 16384, v{VVA}")
    if t == 5: a(f"v_xor_b32 v{VKB}, 16384, v{VKB}")
    if t == 6: a(f"v_xor_b32 v{VVB}, 16384, v{VVB}")
    for i in range(5, 10): a(E[i])
    for i in range(0, 4): a(C[i])
    a(E[10]); a(E[11])
    mfma(a, O, Vc, P)
    for i in range(12, 16): a(E[i])
    for i in range(4, 8): a(C[i])

def lane_tr_nat(a, dst, tmp):
    a(f"v_bfe_u32 v{dst}, v0, 2, 2")
    a(f"v_lshl_add_u32 v{dst}, v3, 3, v{dst}")
    tr_tail(a, dst, tmp)
def lane_tr_perm(a, dst, tmp):
    a(f"v_bfe_u32 v{dst}, v0, 2, 2")
    a(f"v_lshl_add_u32 v{dst}, v3, 2, v{dst}")
    tr_tail(a, dst, tmp)
def tr_tail(a, dst, tmp):
    a(f"v_lshlrev_b32 v{dst}, 7, v{dst}")
    a(f"v_bfe_u32 v{tmp}, v0, 4, 1")
    a(f"v_lshlrev_b32 v{tmp}, 1, v{tmp}")
    a(f"v_bfe_u32 v{tmp+1}, v0, 1, 1")
    a(f"v_add_u32 v{tmp}, v{tmp}, v{tmp+1}")
    a(f"v_bfe_u32 v{tmp+1}, v0, 3, 1")
    a(f"v_lshlrev_b32 v{tmp+1}, 2, v{tmp+1}")
    a(f"v_xor_b32 v{tmp}, v{tmp}, v{tmp+1}")
    a(f"v_lshl_add_u32 v{dst}, v{tmp}, 4, v{dst}")
    a(f"v_and_b32 v{tmp}, 1, v0")
    a(f"v_lshl_add_u32 v{dst}, v{tmp}, 3, v{dst}")
def lane_dma128(a, dst, tmp):
    a(f"v_lshrrev_b32 v{dst}, 3, v0")
    a(f"v_bfe_u32 v{tmp}, v{dst}, 1, 1")
    a(f"v_lshlrev_b32 v{tmp}, 2, v{tmp}")
    a(f"v_and_b32 v{tmp+1}, 7, v0")
    a(f"v_xor_b32 v{tmp}, v{tmp}, v{tmp+1}")
    a(f"v_lshlrev_b32 v{tmp}, 4, v{tmp}")
    a(f"v_lshl_add_u32 v{dst}, v{dst}, 10, v{tmp}")

def dma_loop(a, tag, n, voff, srd_, s_glob, s_lds, gstep, lstep, sc1=False):
    for i in range(n):
        a(f"s_mov_b32 m0, s{s_lds}")
        a(f"s_add_u32 s{s_lds}, s{s_lds}, {lstep}")
        a(f"buffer_load_dwordx4 v{voff}, s[{srd_}:{srd_+3}], s{s_glob} offen{' sc1' if sc1 else ''} lds")
        a(f"s_add_u32 s{s_glob}, s{s_glob}, {gstep}")

def gen_a(a):
    a("s_lshl_b32 s66, s7, 6")
    a("s_mul_i32 s67, s8, 6")
    a("s_add_u32 s66, s66, s67")
    a("s_lshl_b32 s66, s66, 10")
    a(f"s_mul_i32 s67, s8, {6*XPITCH}")
    a(f"s_add_u32 s67, s67, {XR}")
    dma_loop(a, "ax", 6, 1, SG0, 66, 67, 1024, XPITCH)
    a("s_lshl_b32 s66, s8, 15")
    a("s_lshl_b32 s68, s6, 7")
    a("s_add_u32 s66, s66, s68")
    a("s_lshl_b32 s67, s8, 12")
    dma_loop(a, "aq", 4, 4, SG1, 66, 67, 8192, 1024)
    a("s_and_b32 s9, s8, 1             ; rt")
    a("s_lshr_b32 s10, s8, 1")
    a(f"v_mul_u32_u24 v7, {XPITCH}, v2")
    a("v_lshl_add_u32 v7, v3, 4, v7    ; n*pitch + h*16")
    a(f"s_mul_i32 s66, s9, {32*XPITCH}")
    a("s_lshl_b32 s67, s10, 8")
    a("s_add_u32 s67, s67, s66")
    a(f"s_add_u32 s67, s67, {XR}")
    a("v_add_u32 v8, s67, v7")
    stamp(a, 1)
    a("s_waitcnt vmcnt(4) lgkmcnt(0)")
    a("s_add_u32 s15, s15, 1             ; nonce")
    a("s_barrier                        ; B1")
    stamp(a, 2)
    X = 16
    for s in range(8):
        a(f"ds_read_b128 v[{X+4*s}:{X+4*s+3}], v8 offset:{s*32}")
    a("v_mov_b32 v9, 0x3f803f80")
    for r in range(10, 14): a(f"v_mov_b32 v{r}, 0")
    for s in range(8):
        a(f"s_waitcnt lgkmcnt({7-s})")
        for q in range(4):
            r = X + 4 * s + q
            a(f"v_dot2_f32_bf16 v{10+(q&1)}, v{r}, v9, v{10+(q&1)}")
            a(f"v_dot2_f32_bf16 v{12+(q&1)}, v{r}, v{r}, v{12+(q&1)}")
    a("s_lshl_b32 s66, s9, 11")
    a("s_lshl_b32 s67, s10, 9")
    a("s_add_u32 s66, s66, s67")
    a(f"s_add_u32 s66, s66, {ST}")
    a("v_lshlrev_b32 v14, 3, v0")
    a("v_add_u32 v14, s66, v14")
    a("v_add_f32 v10, v10, v11")
    a("v_add_f32 v11, v12, v13")
    a("ds_write_b64 v14, v[10:11]")
    a("s_waitcnt lgkmcnt(0)")
    a("s_barrier                        ; B2")
    a("s_lshl_b32 s66, s9, 11")
    a(f"s_add_u32 s66, s66, {ST}")
    a("v_lshlrev_b32 v14, 3, v2")
    a("v_add_u32 v14, s66, v14")
    for q in range(8):
        a(f"ds_read_b64 v[{48+2*q}:{49+2*q}], v14 offset:{q*256}")
    a("s_waitcnt lgkmcnt(0)")
    for step in (8, 4, 2):
        for q in range(0, step, 2):
            a(f"v_add_f32 v{48+q}, v{48+q}, v{48+q+step}")
            a(f"v_add_f32 v{49+q}, v{49+q}, v{49+q+step}")
    a(f"v_mul_f32 v48, {hex(f2u(1/512))}, v48")
    a(f"v_mul_f32 v49, {hex(f2u(1/512))}, v49")
    a("v_fma_f32 v49, -v48, v48, v49")
    a("v_max_f32 v49, 0, v49")
    a(f"v_add_f32 v49, {hex(f2u(1e-5))}, v49")
    a("v_rsq_f32 v49, v49")
    a("s_nop 0")
    a("v_mul_f32 v48, v48, v49")
    a("v_sub_f32 v48, 0, v48")
    a("v_mov_b32 v15, 0xffff0000")
    for r in range(32):
        x = X + r
        t0, t1 = 50 + 2 * (r & 1), 51 + 2 * (r & 1)
        a(f"v_lshlrev_b32 v{t0}, 16, v{x}")
        a(f"v_and_b32 v{t1}, v15, v{x}")
        a(f"v_fma_f32 v{t0}, v{t0}, v49, v48")
        a(f"v_fma_f32 v{t1}, v{t1}, v49, v48")
        a(f"v_cvt_pk_bf16_f32 v{x}, v{t0}, v{t1}")
        if r % 4 == 3:
            s = r // 4
            a(f"ds_write_b128 v8, v[{X+4*s}:{X+4*s+3}] offset:{s*32}")
    a("s_lshr_b32 s11, s8, 2           ; ft")
    a("s_bfe_u32 s12, s8, 0x10001      ; kh")
    lane_tr_nat(a, 23, 20)
    a("s_lshl_b32 s66, s11, 6")
    a("v_xor_b32 v23, s66, v23")
    a("s_lshl_b32 s66, s12, 15")
    a(f"s_add_u32 s66, s66, {WQ}")
    a("v_add_u32 v23, s66, v23          ; A addr")
    a(f"s_mul_i32 s66, s9, {32*XPITCH}")
    a("s_lshl_b32 s67, s12, 9")
    a("s_add_u32 s66, s66, s67")
    a(f"s_add_u32 s66, s66, {XR}")
    a("v_add_u32 v24, s66, v7           ; B addr")
    stamp(a, 3)
    a("s_waitcnt vmcnt(0) lgkmcnt(0)")
    a("s_barrier                        ; B3")
    ACC = 64; AB = [80, 84, 88]; BB = [92, 96, 100]
    def ld(s):
        A = AB[s % 3]; B = BB[s % 3]
        a(f"ds_read_b64_tr_b16 v[{A}:{A+1}], v23 offset:{s*2048}")
        a(f"ds_read_b64_tr_b16 v[{A+2}:{A+3}], v23 offset:{s*2048+512}")
        a(f"ds_read_b128 v[{B}:{B+3}], v24 offset:{s*32}")
    ld(0); ld(1)
    for s in range(16):
        if s + 2 < 16:
            ld(s + 2); a("s_waitcnt lgkmcnt(6)")
        elif s + 1 < 16: a("s_waitcnt lgkmcnt(3)")
        else: a("s_waitcnt lgkmcnt(0)")
        mfma(a, ACC, AB[s % 3], BB[s % 3], "0" if s == 0 else None)
    a("s_barrier                        ; B4")
    a("s_lshl_b32 s66, s8, 11")
    a(f"s_add_u32 s66, s66, {QX}")
    a("v_add_u32 v14, s66, v1")
    a("s_xor_b32 s67, s8, 2")
    a("s_lshl_b32 s67, s67, 11")
    a(f"s_add_u32 s67, s67, {QX}")
    a("v_add_u32 v15, s67, v1")
    a("s_nop 6")
    a("s_cmp_eq_u32 s12, 0")
    a("s_cbranch_scc0 a_kh1")
    a(f"ds_write_b128 v14, v[{ACC+8}:{ACC+11}]")
    a(f"ds_write_b128 v14, v[{ACC+12}:{ACC+15}] offset:1024")
    for r in range(8): a(f"v_mov_b32 v{48+r}, v{ACC+r}")
    a("s_branch a_khj")
    a.label("a_kh1")
    a(f"ds_write_b128 v14, v[{ACC}:{ACC+3}]")
    a(f"ds_write_b128 v14, v[{ACC+4}:{ACC+7}] offset:1024")
    for r in range(8): a(f"v_mov_b32 v{48+r}, v{ACC+8+r}")
    a.label("a_khj")
    a("s_waitcnt lgkmcnt(0)")
    a("s_barrier                        ; B5")
    a("ds_read_b128 v[56:59], v15")
    a("ds_read_b128 v[60:63], v15 offset:1024")
    a(f"s_mov_b32 s66, {hex(f2u(QSCALE))}")
    a("s_waitcnt lgkmcnt(0)")
    a("s_barrier                        ; B6")
    for r in range(8): a(f"v_add_f32 v{48+r}, v{48+r}, v{56+r}")
    for r in range(8): a(f"v_mul_f32 v{48+r}, s66, v{48+r}")
    for r in range(4): a(f"v_cvt_pk_bf16_f32 v{Q+r}, v{48+2*r}, v{49+2*r}")
    stamp(a, 4)
    a(f"v_add_u32 v{VKA}, {KVR}, v1")
    a(f"v_add_u32 v{VKB}, {KVR+8192}, v1")
    a("v_and_b32 v15, 15, v0")
    a("v_lshlrev_b32 v15, 4, v15")
    a("v_lshl_add_u32 v15, v3, 8, v15")
    a(f"v_add_u32 v{VVA}, {KVR+1024}, v15")
    a(f"v_add_u32 v{VVB}, {KVR+1024+8192}, v15")
    a(f"v_mov_b32 v{VLC}, {LC}")
    a(f"v_mov_b32 v{VONE}, 1")
    a(f"s_mov_b32 s{EXM}, 0xffff")
    a(f"s_mov_b32 s{EXM+1}, 0xffff")
    a("v_and_b32 v15, 27, v0")
    a("v_cmp_eq_u32 vcc, 16, v15")
    a("v_mov_b32 v15, 0x3f803f80")
    for r in range(16): a(f"v_mov_b32 v{O+r}, 0")
    a("v_cndmask_b32 v15, 0, v15, vcc")
    for r in range(8): a(f"v_mov_b32 v{P+r}, 0")
    for r in range(16): a(f"v_mov_b32 v{VB[0]+r}, v15")
    a("s_cmp_eq_u32 s8, 0")
    a("s_cbranch_scc0 a_wlds")
    a("v_lshlrev_b32 v15, 2, v0")
    a("s_and_b32 s67, s2, 15")
    a("s_lshl_b32 s67, s67, 8")
    a(f"s_add_u32 s67, s67, {KVF_O}")
    poll_flags(a, "kv", 15, 16, 67, 64, sleep=2)
    lds_lane0(a, f"ds_write_b32 v{VLC}, v{VONE} offset:4")
    a("s_branch a_kvgo")
    a.label("a_wlds")
    a(f"ds_read_b32 v16, v{VLC} offset:4")
    a("s_waitcnt lgkmcnt(0)")
    a("v_readfirstlane_b32 s66, v16")
    a("s_nop 0")
    a("s_cmp_eq_u32 s66, 1")
    a("s_cbranch_scc1 a_kvgo")
    a("s_sleep 1")
    a("s_branch a_wlds")
    a.label("a_kvgo")
    stamp(a, 5)
    a("s_lshl_b32 s72, s8, 10")
    a(f"s_add_u32 s73, s72, {KVR}")
    for c in range(3):
        a(f"s_add_u32 m0, s73, {c*8192}")
        if c: a("s_add_u32 s72, s72, 8192")
        else: a("s_nop 0")
        a(f"buffer_load_dwordx4 v1, s[{SKV}:{SKV+3}], s72 offen sc1 lds")
    a("s_mov_b32 s74, 0x6000")
    a("s_waitcnt vmcnt(1)")
    lds_lane0(a, f"ds_add_u32 v{VLC}, v{VONE}")
    a.label("a_w0")
    a(f"ds_read_b32 v{VCNT}, v{VLC}")
    a("s_waitcnt lgkmcnt(0)")
    a(f"v_readfirstlane_b32 s70, v{VCNT}")
    a("s_nop 0")
    a("s_cmp_ge_u32 s70, 8")
    a("s_cbranch_scc0 a_w0")
    a("s_mov_b32 s71, 16")
    stamp(a, 6)
    a(f"ds_read_b128 v[{KB[0]}:{KB[0]+3}], v{VKA}")
    a(f"ds_read_b128 v[{KB[1]}:{KB[1]+3}], v{VKA} offset:2048")
    a(f"s_mov_b64 exec, s[{EXM}:{EXM+1}]")
    a(f"ds_read_b128 v[{VB[0]}:{VB[0]+3}], v{VVA}")
    a(f"ds_read_b128 v[{VB[0]+4}:{VB[0]+7}], v{VVA} offset:512")
    a("s_mov_b64 exec, -1")
    a("s_waitcnt lgkmcnt(2)")
    mfma(a, S[0], KB[0], Q, "0")
    mfma(a, S[1], KB[1], Q, "0")
    a("s_nop 7"); a("s_nop 3")
    a(f"v_max3_f32 v15, v{S[0]}, v{S[0]+1}, v{S[0]+2}")
    for i in range(3, 15, 2): a(f"v_max3_f32 v15, v15, v{S[0]+i}, v{S[0]+i+1}")
    a(f"v_max3_f32 v14, v{S[0]+15}, v{S[1]}, v{S[1]+1}")
    for i in range(2, 16, 2): a(f"v_max3_f32 v14, v14, v{S[1]+i}, v{S[1]+i+1}")
    a("v_max_f32 v15, v15, v14")
    a("v_mov_b32 v14, v15")
    a("s_nop 1")
    a("v_permlane32_swap_b32 v15, v14")
    a("s_nop 0")
    a("v_max_f32 v15, v15, v14")
    a(f"v_add_f32 v15, {hex(f2u(MOFF))}, v15")
    for r in range(16): a(f"v_sub_f32 v{NM+r}, 0, v15")
    a("s_nop 1")
    mfma(a, S[0], KB[0], Q, NM)
    a("s_mov_b32 s12, 8")
    a("s_nop 7"); a("s_nop 1")
    stamp(a, 7)
    a(".p2align 6")
    a.label("a_loop")
    for t in range(8): attn_unit(a, t)
    a("s_sub_u32 s12, s12, 1")
    a("s_cmp_lg_u32 s12, 0")
    a("s_cbranch_scc1 a_loop")
    stamp(a, 8)
    a("s_setprio 3")
    mfma(a, O, VB[1] + 4, P + 4)
    a("s_mov_b32 s13, 0")
    a.label("a_fin")
    a("s_waitcnt vmcnt(0) lgkmcnt(0)")
    a("s_nop 7"); a("s_nop 3")
    a(f"v_mul_f32 v15, 0, v{O}")
    for r in range(1, 9): a(f"v_fma_f32 v15, v{O+r}, 0, v15")
    a("v_cmp_u_f32 vcc, v15, v15")
    a("s_cmp_lg_u32 s13, 0")
    a("s_cbranch_scc1 a_norm")
    a("s_nop 1")
    a("s_cmp_lg_u64 vcc, 0")
    a("s_cbranch_scc1 a_fallback")
    a.label("a_norm")
    a(f"v_rcp_f32 v15, v{O+8}")
    a("s_lshl_b32 s66, s7, 1")
    a("s_add_u32 s66, s66, s9")
    a("s_lshl_b32 s66, s66, 5")
    a("s_lshl_b32 s67, s6, 2")
    a("s_add_u32 s66, s66, s67")
    a("s_add_u32 s66, s66, s10")
    a("s_lshl_b32 s66, s66, 10")
    a(f"s_add_u32 s66, s66, {OF_O}")
    for r in range(8): a(f"v_mul_f32 v{O+r}, v{O+r}, v15")
    for r in range(4): a(f"v_cvt_pk_bf16_f32 v{P+r}, v{O+2*r}, v{O+2*r+1}")
    a(f"buffer_store_dwordx4 v[{P}:{P+3}], v1, s[{SWS}:{SWS+3}], s66 offen sc0 sc1")
    a("s_waitcnt vmcnt(0)")
    a("s_mov_b64 exec, 1")
    a(f"ds_add_rtn_u32 v15, v{VLC}, v{VONE} offset:8")
    a("s_waitcnt lgkmcnt(0)")
    a("v_readfirstlane_b32 s66, v15")
    a("s_lshl_b32 s67, s7, 8")
    a("s_lshl_b32 s68, s6, 2")
    a("s_add_u32 s67, s67, s68")
    a(f"s_add_u32 s67, s67, {CN_O + 128}")
    a("s_cmp_eq_u32 s66, 7")
    a("s_cbranch_scc0 a_done")
    a("v_mov_b32 v15, 0")
    a("v_mov_b32 v14, s15")
    a(f"buffer_store_dword v14, v15, s[{SWS}:{SWS+3}], s67 offen sc0 sc1")
    a.label("a_done")
    stamp(a, 9); stamp_rt(a, 11)
    a("s_mov_b64 exec, -1")
    prof_flush2(a)
    a("s_endpgm")
    a.label("a_fallback")
    a("v_mov_b32 v15, 0xff800000")
    a("s_mov_b32 s66, 0")
    a.label("a_fb1")
    a(f"buffer_load_dwordx4 v[{KB[0]}:{KB[0]+3}], v1, s[{SKV}:{SKV+3}], s66 offen sc1")
    a("s_waitcnt vmcnt(0)")
    mfma(a, S[0], KB[0], Q, "0")
    a("s_nop 7"); a("s_nop 3")
    for i in range(0, 16, 2): a(f"v_max3_f32 v15, v15, v{S[0]+i}, v{S[0]+i+1}")
    a("s_add_u32 s66, s66, 2048")
    a("s_cmp_lt_u32 s66, 0x20000")
    a("s_cbranch_scc1 a_fb1")
    a("v_mov_b32 v14, v15")
    a("s_nop 1")
    a("v_permlane32_swap_b32 v15, v14")
    a("s_nop 0")
    a("v_max_f32 v15, v15, v14")
    for r in range(16): a(f"v_sub_f32 v{NM+r}, 0, v15")
    for r in range(16): a(f"v_mov_b32 v{O+r}, 0")
    a("v_and_b32 v14, 15, v0")
    a("v_lshlrev_b32 v14, 4, v14")
    a("v_lshl_add_u32 v14, v3, 8, v14")
    a("v_add_u32 v14, 1024, v14")
    a("s_mov_b32 s66, 0")
    a.label("a_fb2")
    a(f"buffer_load_dwordx4 v[{KB[0]}:{KB[0]+3}], v1, s[{SKV}:{SKV+3}], s66 offen sc1")
    a(f"s_mov_b64 exec, s[{EXM}:{EXM+1}]")
    a(f"buffer_load_dwordx4 v[{VB[0]}:{VB[0]+3}], v14, s[{SKV}:{SKV+3}], s66 offen sc1")
    a(f"buffer_load_dwordx4 v[{VB[0]+4}:{VB[0]+7}], v14, s[{SKV}:{SKV+3}], s66 offen offset:512 sc1")
    a("s_mov_b64 exec, -1")
    a("s_waitcnt vmcnt(0)")
    mfma(a, S[0], KB[0], Q, NM)
    a("s_nop 7"); a("s_nop 3")
    for i in range(16): a(f"v_exp_f32 v{S[0]+i}, v{S[0]+i}")
    a("s_nop 0")
    for i in range(8): a(f"v_cvt_pk_bf16_f32 v{P+i}, v{S[0]+2*i}, v{S[0]+2*i+1}")
    a("s_nop 1")
    mfma(a, O, VB[0], P)
    mfma(a, O, VB[0] + 4, P + 4)
    a("s_nop 7"); a("s_nop 3")
    a("s_add_u32 s66, s66, 2048")
    a("s_cmp_lt_u32 s66, 0x20000")
    a("s_cbranch_scc1 a_fb2")
    a("s_mov_b32 s13, 1")
    a("s_branch a_fin")

def prof_flush2(a):
    import common
    if not common.PROF: return
    a("s_lshl_b32 s78, s2, 4")
    a("s_add_u32 s78, s78, s8")
    a("s_lshl_b32 s78, s78, 6")
    a(f"s_add_u32 s78, s78, {PRF_O}")
    a("s_mov_b64 exec, 1")
    a("v_mov_b32 v160, 0")
    for i in range(14):
        a(f"v_mov_b32 v161, s{80+i}")
        a(f"buffer_store_dword v161, v160, s[{SWS}:{SWS+3}], s78 offen offset:{4*i}")
    a("s_mov_b64 exec, -1")

GACC = 16; GA = [112, 124]; GB = [136, 144]; GVO = [4, 5, 6]; GVA = 7; GVB = 8; STG = 6272
GLC = 9
def g_reads(a, rs, buf, s, kso):
    for u in range(3):
        A = GA[rs] + 4 * u
        o = buf * STG + s * 1536 + u * 32
        a(f"ds_read_b64_tr_b16 v[{A}:{A+1}], v{GVA} offset:{o}")
        a(f"ds_read_b64_tr_b16 v[{A+2}:{A+3}], v{GVA} offset:{o+384}")
    for rt in range(2):
        B = GB[rs] + 4 * rt
        a(f"ds_read_b128 v[{B}:{B+3}], v{GVB} offset:{rt*32*XPITCH + kso}")
def g_mfmas(a, rs):
    for u in range(3):
        for rt in range(2):
            mfma(a, GACC + (u * 2 + rt) * 16, GA[rs] + 4 * u, GB[rs] + 4 * rt)
def g_dma(a, buf):
    for m, srd_ in ((0, SG0), (1, SG1)):
        for i in range(3):
            a(f"s_add_u32 m0, s69, {buf*STG + m*3200 + i*1024}")
            a("s_nop 0")
            a(f"buffer_load_dwordx4 v{GVO[i]}, s[{srd_}:{srd_+3}], s68 offen lds")
    a(f"s_add_u32 s68, s68, {32*2752}")

DACC = 16; DBR = 80; DAF = [128, 136]; NS = 22; DEPTH = 6
def down_issue(a, s):
    slot = s % DEPTH
    for i in range(2):
        a(f"s_add_u32 m0, s69, {slot*2048 + i*1024}")
        a("s_nop 0")
        a(f"buffer_load_dwordx4 v4, s[{SG0}:{SG0+3}], s68 offen lds")
        a("s_add_u32 s68, s68, 8192")
    for rt in range(2):
        B = DBR + slot * 8 + rt * 4
        srd_ = (SG1, SG2)[rt]
        a(f"buffer_load_dwordx4 v[{B}:{B+3}], v1, s[{srd_}:{srd_+3}], s70 offen sc1")
    a("s_add_u32 s70, s70, 1024")
def a_reads(a, A0, v0reg, v1reg, off):
    for ct, vr_ in ((0, v0reg), (1, v1reg)):
        A = A0 + 4 * ct
        a(f"ds_read_b64_tr_b16 v[{A}:{A+1}], v{vr_} offset:{off}")
        a(f"ds_read_b64_tr_b16 v[{A+2}:{A+3}], v{vr_} offset:{off+1024}")

def sgpr_select4(a, dst, vals):
    a(f"s_mov_b32 s{dst}, {vals[0]}")
    for g in range(1, 4):
        a(f"s_cmp_eq_u32 s9, {g}")
        a(f"s_cselect_b32 s{dst}, {vals[g]}, s{dst}")

def gen_g(a):
    a("s_sub_u32 s9, s8, 8              ; g")
    a("s_lshl_b32 s66, s7, 6")
    a("s_lshl_b32 s67, s9, 2")
    a("s_add_u32 s66, s66, s67")
    a("s_add_u32 s66, s66, 48")
    a("s_lshl_b32 s66, s66, 10")
    a(f"s_mul_i32 s67, s9, {4*XPITCH}")
    a(f"s_add_u32 s67, s67, {XR + 48*XPITCH}")
    dma_loop(a, "gx", 4, 1, SG0, 66, 67, 1024, XPITCH)
    a("s_lshl_b32 s66, s9, 16")
    a("s_add_u32 s66, s66, 0x40000")
    a("s_lshl_b32 s68, s6, 7")
    a("s_add_u32 s66, s66, s68")
    a("s_lshl_b32 s67, s9, 13")
    a(f"s_add_u32 s67, s67, {WQ + 32*1024}")
    dma_loop(a, "gq", 8, 4, SG1, 66, 67, 8192, 1024)
    a("s_lshl_b32 s66, s9, 12")
    a(f"s_add_u32 s67, s66, {WKV}")
    a("s_mov_b32 m0, s67")
    a("s_cmp_ge_u32 s6, 2")
    a("s_cbranch_scc1 g_nokv")
    for i in range(4):
        a(f"buffer_load_dwordx4 v1, s[{SG2}:{SG2+3}], s66 offen offset:{i*1024} lds")
    a("s_waitcnt vmcnt(12)")
    a("s_branch g_kvj")
    a.label("g_nokv")
    a("s_waitcnt vmcnt(8)")
    a.label("g_kvj")
    a(f"v_mov_b32 v{GLC}, {LC}")
    a("s_cmp_eq_u32 s9, 0")
    a("s_cbranch_scc0 g_nz")
    a("v_mov_b32 v10, 0")
    a("v_mov_b32 v11, 0")
    a("v_mov_b32 v12, 0")
    a("v_mov_b32 v13, 0")
    lds_lane0(a, f"ds_write_b128 v{GLC}, v[10:13]")
    a("s_waitcnt lgkmcnt(0)")
    a.label("g_nz")
    a("s_waitcnt lgkmcnt(0)")
    a("s_add_u32 s15, s15, 1             ; nonce")
    stamp(a, 1)
    a("s_barrier                        ; B1")
    a("s_barrier                        ; B2")
    a("s_waitcnt vmcnt(0)")
    a("s_barrier                        ; B3")
    stamp(a, 2)
    a("s_cmp_ge_u32 s6, 2")
    a("s_cbranch_scc1 g_skipkv")
    a("s_and_b32 s10, s9, 1             ; rt")
    a("s_lshr_b32 s11, s9, 1            ; kh")
    a("v_bfe_u32 v20, v0, 2, 2")
    a("v_and_b32 v21, 3, v0")
    a("v_lshlrev_b32 v23, 8, v3")
    a("v_lshl_add_u32 v23, v20, 5, v23")
    a("v_lshl_add_u32 v23, v21, 3, v23")
    a("s_lshl_b32 s66, s11, 13")
    a(f"s_add_u32 s66, s66, {WKV}")
    a("v_add_u32 v23, s66, v23")
    a(f"v_mul_u32_u24 v7, {XPITCH}, v2")
    a("v_lshl_add_u32 v7, v3, 4, v7")
    a(f"s_mul_i32 s66, s10, {32*XPITCH}")
    a("s_lshl_b32 s67, s11, 9")
    a("s_add_u32 s66, s66, s67")
    a(f"s_add_u32 s66, s66, {XR}")
    a("v_add_u32 v24, s66, v7")
    ACC = 64
    def kvld(s):
        A = 80 + 8 * (s % 4)
        a(f"ds_read_b64_tr_b16 v[{A}:{A+1}], v23 offset:{s*512}")
        a(f"ds_read_b64_tr_b16 v[{A+2}:{A+3}], v23 offset:{s*512+128}")
        a(f"ds_read_b128 v[{A+4}:{A+7}], v24 offset:{s*32}")
    for chain in range(2):
        if chain == 0:
            a("s_cmp_eq_u32 s6, 1")
            a("s_cbranch_scc1 g_vchain")
        else:
            a.label("g_vchain")
        kvld(0); kvld(1); kvld(2)
        for s in range(16):
            if s + 3 < 16: kvld(s + 3); a("s_waitcnt lgkmcnt(9)")
            else: a(f"s_waitcnt lgkmcnt({3*(15-s)})")
            A = 80 + 8 * (s % 4)
            if chain == 0: mfma(a, ACC, A, A + 4, "0" if s == 0 else None)
            else: mfma(a, ACC, A + 4, A, "0" if s == 0 else None)
        if chain == 0: a("s_branch g_kvdone")
    a.label("g_kvdone")
    a("s_barrier                        ; B4")
    a("s_lshl_b32 s66, s9, 12")
    a(f"s_add_u32 s66, s66, {KRED - 4096}")
    a("v_add_u32 v14, s66, v1")
    a("s_nop 6")
    a("s_cmp_eq_u32 s9, 0")
    a("s_cbranch_scc1 g_kvw0")
    for q in range(4): a(f"ds_write_b128 v14, v[{ACC+4*q}:{ACC+4*q+3}] offset:{q*1024}")
    a("s_waitcnt lgkmcnt(0)")
    a("s_barrier                        ; B5")
    a("s_barrier                        ; B6")
    a("s_branch g_gateup")
    a.label("g_kvw0")
    a("s_barrier                        ; B5")
    a(f"v_add_u32 v14, {KRED}, v1")
    for g in range(3):
        for q in range(4):
            a(f"ds_read_b128 v[{80+16*g+4*q}:{83+16*g+4*q}], v14 offset:{g*4096+q*1024}")
    a("s_waitcnt lgkmcnt(0)")
    a("s_barrier                        ; B6")
    for r in range(16):
        a(f"v_add_f32 v{ACC+r}, v{ACC+r}, v{96+r}")
        a(f"v_add_f32 v{80+r}, v{80+r}, v{112+r}")
    for r in range(8):
        a(f"v_cvt_pk_bf16_f32 v{48+r}, v{ACC+2*r}, v{ACC+2*r+1}")
        a(f"v_cvt_pk_bf16_f32 v{56+r}, v{80+2*r}, v{81+2*r}")
    a("s_lshl_b32 s66, s7, 12            ; tile 2c * 2048")
    a("s_cmp_eq_u32 s6, 1")
    a("s_cbranch_scc1 g_vst")
    a(f"buffer_store_dwordx4 v[48:51], v1, s[{SKV}:{SKV+3}], s66 offen sc0 sc1")
    a(f"buffer_store_dwordx4 v[56:59], v1, s[{SKV}:{SKV+3}], s66 offen offset:2048 sc0 sc1")
    a("s_branch g_kvflag")
    a.label("g_vst")
    a("v_lshlrev_b32 v14, 8, v3")
    a("v_lshl_add_u32 v14, v2, 4, v14")
    a("v_mov_b32 v15, 0x40000000")
    a("v_cmp_gt_u32 vcc, 16, v2")
    a("s_add_u32 s66, s66, 1024")
    a("s_nop 1")
    a("v_cndmask_b32 v14, v15, v14, vcc")
    a(f"buffer_store_dwordx4 v[48:51], v14, s[{SKV}:{SKV+3}], s66 offen sc0 sc1")
    a(f"buffer_store_dwordx4 v[52:55], v14, s[{SKV}:{SKV+3}], s66 offen offset:512 sc0 sc1")
    a(f"buffer_store_dwordx4 v[56:59], v14, s[{SKV}:{SKV+3}], s66 offen offset:2048 sc0 sc1")
    a(f"buffer_store_dwordx4 v[60:63], v14, s[{SKV}:{SKV+3}], s66 offen offset:2560 sc0 sc1")
    a.label("g_kvflag")
    a("s_waitcnt vmcnt(0)")
    a("s_lshl_b32 s66, s7, 1")
    a("s_add_u32 s66, s66, s6")
    a("s_lshl_b32 s66, s66, 2")
    a(f"s_add_u32 s66, s66, {KVF_O}")
    a("v_lshlrev_b32 v14, 8, v0")
    a("v_mov_b32 v15, s15")
    a("s_mov_b64 exec, 0xffff")
    a(f"buffer_store_dword v15, v14, s[{SWS}:{SWS+3}], s66 offen sc0 sc1")
    a("s_mov_b64 exec, -1")
    a("s_branch g_gateup")
    a.label("g_skipkv")
    a("s_barrier                        ; B4")
    a("s_barrier                        ; B5")
    a("s_barrier                        ; B6")
    a.label("g_gateup")
    stamp(a, 3)
    srd(a, SG0, P_W1, 512 * 2752)
    srd(a, SG1, P_W3, 512 * 2752)
    a("s_lshl_b32 s10, s6, 2")
    a("s_add_u32 s10, s10, s9           ; gw")
    sgpr_select4(a, 69, GS)
    a("s_mov_b32 s14, 0")
    a("s_cmp_gt_u32 s10, 28")
    a("s_cbranch_scc1 g_after_h")
    for i in range(3):
        a(f"v_add_u32 v10, {64*i}, v0")
        a("v_mul_u32_u24 v11, 43691, v10")
        a("v_lshrrev_b32 v11, 18, v11")
        a("v_mul_u32_u24 v12, 6, v11")
        a("v_sub_u32 v12, v10, v12")
        a("v_mul_u32_u24 v11, 2752, v11")
        a(f"v_lshl_add_u32 v{GVO[i]}, v12, 4, v11")
    a("s_mul_i32 s68, s10, 96")
    g_dma(a, 0); g_dma(a, 1)
    a("v_bfe_u32 v10, v0, 2, 2")
    a("v_lshl_add_u32 v10, v3, 3, v10")
    a("v_mul_u32_u24 v10, 96, v10")
    a("v_and_b32 v11, 3, v0")
    a("v_lshl_add_u32 v10, v11, 3, v10")
    a("v_bfe_u32 v11, v0, 4, 1")
    a("v_mul_u32_u24 v11, 3200, v11")
    a("v_add_u32 v10, v10, v11")
    a(f"v_add_u32 v{GVA}, s69, v10")
    a(f"v_mul_u32_u24 v{GVB}, {XPITCH}, v2")
    a(f"v_lshl_add_u32 v{GVB}, v3, 4, v{GVB}")
    a(f"v_add_u32 v{GVB}, {XR}, v{GVB}")
    for r in range(96): a(f"v_mov_b32 v{GACC+r}, 0")
    a("s_waitcnt vmcnt(6)")
    g_reads(a, 0, 0, 0, 0)
    a("s_mov_b32 s12, 8")
    a.label("g_loop")
    for buf in range(2):
        kso = 64 * buf
        g_reads(a, 1, buf, 1, kso + 32)
        a("s_waitcnt lgkmcnt(8)")
        g_mfmas(a, 0)
        a("s_waitcnt vmcnt(0) lgkmcnt(0)")
        g_dma(a, buf)
        g_reads(a, 0, 1 - buf, 0, kso + 64)
        g_mfmas(a, 1)
    a(f"v_add_u32 v{GVB}, 128, v{GVB}")
    a("s_sub_u32 s12, s12, 1")
    a("s_cmp_lg_u32 s12, 0")
    a("s_cbranch_scc1 g_loop")
    stamp(a, 4)
    a("s_setprio 3")
    a("s_waitcnt vmcnt(0) lgkmcnt(0)")
    a("s_nop 7"); a("s_nop 3")
    a(f"s_mov_b32 s66, {hex(f2u(-1.4426950408889634))}")
    a("s_mov_b32 s67, s66")
    a("s_mov_b32 s72, 1.0")
    a("s_mov_b32 s73, 1.0")
    a(f"s_mul_i32 s70, s7, {2*NF}")
    a("s_mul_i32 s71, s10, 3")
    a("s_add_u32 s70, s70, s71")
    a("s_lshl_b32 s70, s70, 10")
    a(f"s_add_u32 s70, s70, {HF_O}")
    T = 112
    for u in range(3):
        if u == 2:
            a("s_cmp_eq_u32 s10, 28")
            a("s_cbranch_scc1 g_hdone")
        for rt in range(2):
            A = GACC + (u * 2 + rt) * 16
            for i in range(0, 8, 2): a(f"v_pk_mul_f32 v[{T+i}:{T+i+1}], v[{A+i}:{A+i+1}], s[66:67]")
            for i in range(8): a(f"v_exp_f32 v{T+i}, v{T+i}")
            for i in range(0, 8, 2): a(f"v_pk_mul_f32 v[{A+i}:{A+i+1}], v[{A+i}:{A+i+1}], v[{A+8+i}:{A+9+i}]")
            for i in range(0, 8, 2): a(f"v_pk_add_f32 v[{T+i}:{T+i+1}], v[{T+i}:{T+i+1}], s[72:73]")
            for i in range(8): a(f"v_rcp_f32 v{T+i}, v{T+i}")
            a("s_nop 0")
            for i in range(0, 8, 2): a(f"v_pk_mul_f32 v[{A+i}:{A+i+1}], v[{A+i}:{A+i+1}], v[{T+i}:{T+i+1}]")
            D = 120 + 4 * ((u * 2 + rt) & 1)
            for i in range(4): a(f"v_cvt_pk_bf16_f32 v{D+i}, v{A+2*i}, v{A+2*i+1}")
            a(f"s_add_u32 s71, s70, {(rt*NF + u)*1024}")
            a(f"buffer_store_dwordx4 v[{D}:{D+3}], v1, s[{SWS}:{SWS+3}], s71 offen sc0 sc1")
    a.label("g_hdone")
    a("s_setprio 0")
    a("s_lshl_b32 s70, s7, 8")
    a("s_lshl_b32 s71, s10, 2")
    a("s_add_u32 s70, s70, s71")
    a(f"s_add_u32 s70, s70, {CN_O}")
    a("v_mov_b32 v10, 0")
    a("v_mov_b32 v11, s15")
    a("s_waitcnt vmcnt(0)")
    lds_lane0(a, f"buffer_store_dword v11, v10, s[{SWS}:{SWS+3}], s70 offen sc0 sc1")
    a.label("g_after_h")
    a("v_mov_b32 v160, 0")
    a("s_cmp_eq_u32 s9, 3")
    a("s_cbranch_scc0 g_noep")
    a("v_mov_b32 v10, 0")
    a("v_mov_b32 v160, 1")
    lds_lane0(a, f"buffer_atomic_add v160, v10, s[{SDBG}:{SDBG+3}], 0 offen sc0 sc1")
    a.label("g_noep")
    stamp(a, 5)
    gsync(a, "x", GLC, 10, 14)
    srd(a, SG0, P_WO, 512 * 1024)
    lane_dma128(a, 4, 10)
    lane_tr_perm(a, 7, 10)
    a("s_lshl_b32 s66, s9, 17")
    a("s_lshl_b32 s67, s6, 7")
    a("s_add_u32 s66, s66, s67")
    a("s_lshl_b32 s67, s9, 14")
    a(f"s_add_u32 s67, s67, {WO}")
    dma_loop(a, "wo", 16, 4, SG0, 66, 67, 8192, 1024)
    srd(a, SG0, P_W2, 1376 * 1024)
    a(f"s_mul_i32 s66, s7, {2*NF*1024}")
    a(f"s_add_u32 s66, s66, {HF_O}")
    a(f"s_add_u32 s{SG1}, s{P_WS}, s66")
    a(f"s_addc_u32 s{SG1+1}, s{P_WS+1}, 0")
    a(f"s_mov_b32 s{SG1+2}, {NF*1024}")
    a(f"s_mov_b32 s{SG1+3}, 0x20000")
    a(f"s_add_u32 s{SG2}, s{SG1}, {NF*1024}")
    a(f"s_addc_u32 s{SG2+1}, s{SG1+1}, 0")
    a(f"s_mov_b32 s{SG2+2}, {NF*1024}")
    a(f"s_mov_b32 s{SG2+3}, 0x20000")
    a(f"s_mul_i32 s68, s9, {NS*16*1024}")
    a("s_lshl_b32 s66, s6, 7")
    a("s_add_u32 s68, s68, s66           ; W2 soffset")
    a("v_add_u32 v5, s69, v7")
    a("v_xor_b32 v6, 64, v5")
    a("s_lshl_b32 s70, s7, 8")
    a(f"s_add_u32 s70, s70, {CN_O}")
    a("v_lshlrev_b32 v10, 2, v0")
    poll_flags(a, "h", 10, 11, 70, 29, sleep=8)
    a("v_readfirstlane_b32 s66, v160")
    a("s_nop 0")
    a("s_cmp_eq_u32 s66, 255")
    a("s_cbranch_scc0 g_noep2")
    a("v_mov_b32 v10, 0")
    a("v_mov_b32 v11, s15")
    a(f"s_mov_b32 s66, {EP_O}")
    lds_lane0(a, f"buffer_store_dword v11, v10, s[{SWS}:{SWS+3}], s66 offen sc0 sc1")
    a.label("g_noep2")
    a(f"s_mul_i32 s70, s9, {NS*1024}     ; h soffset")
    stamp(a, 6)
    for s in range(DEPTH): down_issue(a, s)
    a(f"s_waitcnt vmcnt({4*(DEPTH-1)})")
    a_reads(a, DAF[0], 5, 6, 0)
    for s in range(NS):
        if s + 1 < NS:
            issued = min(NS, s + DEPTH)
            a(f"s_waitcnt vmcnt({4*(issued-(s+2))})")
            a_reads(a, DAF[(s + 1) % 2], 5, 6, ((s + 1) % DEPTH) * 2048)
            a("s_waitcnt lgkmcnt(4)")
        else:
            a("s_waitcnt lgkmcnt(0)")
        slot = s % DEPTH
        for ct in range(2):
            for rt in range(2):
                mfma(a, DACC + (ct * 2 + rt) * 16, DAF[s % 2] + 4 * ct, DBR + slot * 8 + rt * 4, "0" if s == 0 else None)
        if s + DEPTH < NS: down_issue(a, s + DEPTH)
    stamp(a, 7)
    a("s_setprio 3")
    gsync(a, "r0", GLC, 10, 14)
    for ct in range(2):
        for rt in range(2):
            owner = 2 * rt + ct
            T = DACC + (ct * 2 + rt) * 16
            a(f"s_cmp_eq_u32 s9, {owner}")
            a(f"s_cbranch_scc1 g_skipw{owner}")
            a(f"s_sub_u32 s66, s9, {owner+1}")
            a("s_and_b32 s66, s66, 3")
            a("s_lshl_b32 s66, s66, 12")
            a(f"s_add_u32 s66, s66, {RED[owner]}")
            a("v_add_u32 v10, s66, v1")
            for q in range(4): a(f"ds_write_b128 v10, v[{T+4*q}:{T+4*q+3}] offset:{q*1024}")
            a.label(f"g_skipw{owner}")
    for owner in range(4):
        ct, rt = owner & 1, owner >> 1
        T = DACC + (ct * 2 + rt) * 16
        a(f"s_cmp_eq_u32 s9, {owner}")
        a(f"s_cbranch_scc0 g_nmv{owner}")
        for r in range(16): a(f"v_mov_b32 v{152+r}, v{T+r}")
        a.label(f"g_nmv{owner}")
    gsync(a, "r1", GLC, 10, 14)
    sgpr_select4(a, 68, RED)
    a("v_add_u32 v10, s68, v1")
    for p in range(3):
        for q in range(4):
            a(f"ds_read_b128 v[{16+16*p+4*q}:{19+16*p+4*q}], v10 offset:{p*4096+q*1024}")
    a("s_waitcnt lgkmcnt(0)")
    for r in range(16):
        a(f"v_add_f32 v{152+r}, v{152+r}, v{16+r}")
        a(f"v_add_f32 v{32+r}, v{32+r}, v{48+r}")
    for r in range(16): a(f"v_add_f32 v{152+r}, v{152+r}, v{32+r}")
    a(f"s_mov_b32 s66, {hex(f2u(-1.4426950408889634))}")
    a("s_mov_b32 s67, s66")
    a("s_mov_b32 s72, 1.0")
    a("s_mov_b32 s73, 1.0")
    for i in range(0, 16, 2): a(f"v_pk_mul_f32 v[{16+i}:{17+i}], v[{152+i}:{153+i}], s[66:67]")
    for i in range(16): a(f"v_exp_f32 v{16+i}, v{16+i}")
    a("s_nop 0")
    for i in range(0, 16, 2): a(f"v_pk_add_f32 v[{16+i}:{17+i}], v[{16+i}:{17+i}], s[72:73]")
    for i in range(16): a(f"v_rcp_f32 v{16+i}, v{16+i}")
    a("s_nop 0")
    for i in range(0, 16, 2): a(f"v_pk_mul_f32 v[{152+i}:{153+i}], v[{152+i}:{153+i}], v[{16+i}:{17+i}]")
    a("s_setprio 0")
    srd(a, SG0, P_X, 2048 * 1024)
    srd(a, SG1, P_OUT, 2048 * 1024)
    a("s_lshr_b32 s10, s9, 1            ; rt")
    a("s_and_b32 s11, s9, 1")
    a("v_lshlrev_b32 v8, 10, v2")
    a("v_lshl_add_u32 v8, v3, 3, v8")
    a("s_lshl_b32 s74, s7, 6")
    a("s_lshl_b32 s66, s10, 5")
    a("s_add_u32 s74, s74, s66")
    a("s_lshl_b32 s74, s74, 10")
    a("s_lshl_b32 s66, s6, 7")
    a("s_add_u32 s74, s74, s66")
    a("s_lshl_b32 s66, s11, 6")
    a("s_add_u32 s74, s74, s66")
    for q in range(4):
        a(f"buffer_load_dwordx2 v[{144+2*q}:{145+2*q}], v8, s[{SG0}:{SG0+3}], s74 offen offset:{q*16}")
    a("s_lshl_b32 s66, s11, 15")
    a(f"s_add_u32 s66, s66, {WO}")
    a("v_add_u32 v5, s66, v7")
    a("v_xor_b32 v6, 64, v5")
    gsync(a, "r2", GLC, 10, 14)
    stamp(a, 8)
    a("s_lshl_b32 s70, s7, 8")
    a(f"s_add_u32 s70, s70, {CN_O + 128}")
    a("v_lshlrev_b32 v10, 2, v0")
    poll_flags(a, "o", 10, 11, 70, 8, sleep=2)
    stamp(a, 9)
    a("s_lshl_b32 s66, s7, 1")
    a("s_add_u32 s66, s66, s10")
    a("s_lshl_b32 s66, s66, 5")
    a("s_lshl_b32 s67, s11, 4")
    a("s_add_u32 s66, s66, s67")
    a("s_lshl_b32 s66, s66, 10")
    a(f"s_add_u32 s66, s66, {OF_O}")
    for i in range(16):
        a(f"buffer_load_dwordx4 v[{80+4*i}:{83+4*i}], v1, s[{SWS}:{SWS+3}], s66 offen offset:{(i%4)*1024} sc1")
        if i % 4 == 3: a("s_add_u32 s66, s66, 4096")
    OA = [16, 32]; AF = [48, 56]
    a_reads(a, AF[0], 5, 6, 0)
    for i in range(16):
        if i + 1 < 16:
            a_reads(a, AF[(i + 1) % 2], 5, 6, (i + 1) * 2048)
            a(f"s_waitcnt vmcnt({15-i}) lgkmcnt(4)")
        else: a("s_waitcnt vmcnt(0) lgkmcnt(0)")
        for ct in range(2):
            mfma(a, OA[ct], AF[i % 2] + 4 * ct, 80 + 4 * i, "0" if i == 0 else None)
    sgpr_select4(a, 68, EX)
    a("v_add_u32 v9, s68, v1")
    a("s_xor_b32 s9, s9, 1")
    sgpr_select4(a, 69, EX)
    a("s_xor_b32 s9, s9, 1")
    a("v_add_u32 v10, s69, v1")
    a("s_cmp_eq_u32 s11, 0")
    a("s_cbranch_scc0 g_ex1")
    for q in range(4): a(f"ds_write_b128 v9, v[{OA[1]+4*q}:{OA[1]+4*q+3}] offset:{q*1024}")
    a("s_branch g_exj")
    a.label("g_ex1")
    for q in range(4): a(f"ds_write_b128 v9, v[{OA[0]+4*q}:{OA[0]+4*q+3}] offset:{q*1024}")
    for r in range(16): a(f"v_mov_b32 v{OA[0]+r}, v{OA[1]+r}")
    a.label("g_exj")
    a("s_waitcnt lgkmcnt(0)")
    a("s_barrier")
    for q in range(4): a(f"ds_read_b128 v[{32+4*q}:{35+4*q}], v10 offset:{q*1024}")
    a("v_mov_b32 v11, 0xffff0000")
    a("s_waitcnt lgkmcnt(0)")
    for r in range(16): a(f"v_add_f32 v{16+r}, v{16+r}, v{32+r}")
    for q in range(4):
        for i in range(2):
            x = 144 + 2 * q + i
            r = 4 * q + 2 * i
            a(f"v_lshlrev_b32 v48, 16, v{x}")
            a(f"v_and_b32 v49, v11, v{x}")
            a(f"v_fma_f32 v48, v{16+r}, v{152+r}, v48")
            a(f"v_fma_f32 v49, v{16+r+1}, v{152+r+1}, v49")
            a(f"v_cvt_pk_bf16_f32 v{x}, v48, v49")
        a(f"buffer_store_dwordx2 v[{144+2*q}:{145+2*q}], v8, s[{SG1}:{SG1+3}], s74 offen offset:{q*16}")
    stamp(a, 10); stamp_rt(a, 11)
    prof_flush2(a)
    a("s_endpgm")

def gen_fused(a):
    name = NAME
    a(".p2align 8")
    a(f".type {name},@function")
    a.label(name)
    a("s_cmp_ge_u32 s2, 256")
    a("s_cbranch_scc1 k_exit")
    a("s_load_dwordx16 s[16:31], s[0:1], 0")
    a("s_load_dwordx8 s[32:39], s[0:1], 64")
    stamp_rt(a, 12)
    a("s_and_b32 s4, s2, 7")
    a("s_lshr_b32 s5, s2, 3")
    a("s_and_b32 s5, s5, 3")
    a("s_lshr_b32 s6, s2, 5          ; member j")
    a("s_lshl_b32 s7, s4, 2")
    a("s_add_u32 s7, s7, s5          ; cluster c")
    a("v_lshrrev_b32 v1, 6, v0")
    a("v_and_b32 v0, 63, v0          ; lane")
    a("v_readfirstlane_b32 s8, v1")
    a("v_lshlrev_b32 v1, 4, v0       ; lane*16")
    a("v_and_b32 v2, 31, v0            ; n")
    a("v_lshrrev_b32 v3, 5, v0         ; h")
    if os.environ.get("CODEPF", "1") == "1":
        a("s_cmp_ge_u32 s8, 8")
        a("s_cbranch_scc0 k_nopf")
        a("s_getpc_b64 s[66:67]")
        a.label("k_pcref")
        a("s_sub_u32 s68, s8, 8")
        a("s_lshl_b32 s68, s68, 13")
        a("v_lshlrev_b32 v10, 7, v0")
        a("v_add_u32 v10, s68, v10")
        a("v_mov_b32 v13, s67")
        a("v_add_co_u32 v12, vcc, s66, v10")
        a("s_mov_b32 s68, k_end - k_pcref")
        a("s_nop 0")
        a("v_addc_co_u32 v13, vcc, 0, v13, vcc")
        a("v_cmp_gt_u32 vcc, s68, v10")
        a("s_nop 0")
        a("s_and_saveexec_b64 s[70:71], vcc")
        a("s_cbranch_execz k_pfj")
        a("global_load_dword v14, v[12:13], off")
        a.label("k_pfj")
        a("s_mov_b64 exec, -1")
        a.label("k_nopf")
    lane_dma128(a, 4, 10)
    a("s_waitcnt lgkmcnt(0)")
    a(f"s_load_dword s15, s[{P_WS}:{P_WS+1}], {hex(EP_O)}")
    stamp(a, 0); stamp_rt(a, 10)
    srd(a, SG0, P_X, 2048 * 1024)
    srd(a, SG1, P_WQ, 512 * 1024)
    srd(a, SWS, P_WS, WS_SZ)
    a(f"s_add_u32 s{SKV}, s{P_WS}, {KV_O}")
    a(f"s_addc_u32 s{SKV+1}, s{P_WS+1}, 0")
    a(f"s_mov_b32 s{SKV+2}, 0x20000")
    a(f"s_mov_b32 s{SKV+3}, 0x20000")
    srd(a, SDBG, P_DBG, 256)
    a("s_cmp_eq_u32 s6, 1")
    a(f"s_cselect_b32 s{SG2}, s{P_WV}, s{P_WK}")
    a(f"s_cselect_b32 s{SG2+1}, s{P_WV+1}, s{P_WK+1}")
    a(f"s_mov_b32 s{SG2+2}, 16384")
    a(f"s_mov_b32 s{SG2+3}, 0x20000")
    a("s_cmp_ge_u32 s8, 8")
    a("s_cbranch_scc1 k_g")
    gen_a(a)
    a.label("k_g")
    gen_g(a)
    a.label("k_exit")
    a("s_endpgm")
    a.label("k_end")
    return name, 168, LDS_SIZE, 768
```

```python
import os
from common import *

NAME = "recurrent_scan__grouped_kv_mqa__glu_gated_swiglu__prompt_kernel"
KVR = 0
WQ = 0
QX = 32768
KRED = 49152
XR = 65536
WKV = 132096
ST = 148480
GSZ = 12800
GS = [32768, 32768 + GSZ, 132096, 132096 + GSZ]
WO = XR
RED = [32768, 32768 + 12288, 132096, 132096 + 12288]
EX = [32768, 32768 + 4096, 132096, 132096 + 4096]
LC = 157696
LDS_SIZE = LC + 64
KV_O = 0x000000
KVF_O = 0x020000
CN_O = 0x024000
EP_O = 0x030000
HF_O = 0x100000
OF_O = 0x700000
WS_SZ = 0xA00000
PRF_O = 0x900000
NF = 86
MOFF = 80.0

SWS, SKV, SG0, SG1, SG2, SDBG = 40, 44, 48, 52, 56, 60
EXM = 64

def lds_lane0(a, ins):
    a("s_mov_b64 exec, 1"); a(ins); a("s_mov_b64 exec, -1")

def gsync(a, tag, vaddr, vtmp, starget):
    a("s_waitcnt lgkmcnt(0)")
    a(f"s_add_u32 s{starget}, s{starget}, 4")
    a("s_mov_b64 exec, 1")
    a(f"v_mov_b32 v{vtmp}, 1")
    a(f"ds_add_u32 v{vaddr}, v{vtmp} offset:12")
    a("s_mov_b64 exec, -1")
    a.label(f"gs_{tag}")
    a(f"ds_read_b32 v{vtmp}, v{vaddr} offset:12")
    a("s_waitcnt lgkmcnt(0)")
    a(f"v_readfirstlane_b32 s66, v{vtmp}")
    a("s_nop 0")
    a(f"s_cmp_ge_u32 s66, s{starget}")
    a(f"s_cbranch_scc1 gs_{tag}_ok")
    a("s_sleep 1")
    a(f"s_branch gs_{tag}")
    a.label(f"gs_{tag}_ok")

def poll_flags(a, tag, voff, vtmp, soff, nlanes, sleep=4):
    m = (1 << nlanes) - 1
    a.label(f"pf_{tag}")
    a(f"buffer_load_dword v{vtmp}, v{voff}, s[{SWS}:{SWS+3}], s{soff} offen sc1")
    a("s_waitcnt vmcnt(0)")
    a(f"v_cmp_ne_u32 vcc, s15, v{vtmp}")
    a("s_nop 0")
    if nlanes < 64:
        if nlanes <= 32:
            a(f"s_and_b32 s66, vcc_lo, {hex(m)}")
            a("s_cmp_eq_u32 s66, 0")
    else:
        a("s_cmp_eq_u64 vcc, 0")
    a(f"s_cbranch_scc1 pf_{tag}_ok")
    a(f"s_sleep {sleep}")
    a(f"s_branch pf_{tag}")
    a.label(f"pf_{tag}_ok")

def poll_word(a, tag, voff, vtmp, soff, target, srd_):
    a.label(f"pw_{tag}")
    a(f"buffer_load_dword v{vtmp}, v{voff}, s[{srd_}:{srd_+3}], s{soff} offen sc1")
    a("s_waitcnt vmcnt(0)")
    a(f"v_readfirstlane_b32 s66, v{vtmp}")
    a("s_nop 0")
    a(f"s_cmp_ge_u32 s66, {target}")
    a(f"s_cbranch_scc1 pw_{tag}_ok")
    a("s_sleep 4")
    a(f"s_branch pw_{tag}")
    a.label(f"pw_{tag}_ok")

Q = 4; VKA = 8; VKB = 9; VVA = 10; VVB = 11; VLC = 12; VONE = 13; VCNT = 14
S = [16, 32]; P = 48; O = 56; NM = 72; KB = [88, 92]; VB = [96, 104]

def attn_unit(a, t):
    p = t & 1
    Sc, Sn = S[p], S[1 - p]
    E = [f"v_exp_f32 v{Sc+i}, v{Sc+i}" for i in range(16)]
    C = [f"v_cvt_pk_bf16_f32 v{P+i}, v{Sc+2*i}, v{Sc+2*i+1}" for i in range(8)]
    Vprev = VB[(t - 1) & 1]; Vc = VB[t & 1]; Vn = VB[(t + 1) & 1]
    a(f"s_setprio {3 - (t % 4)}")
    a("s_waitcnt lgkmcnt(0)")
    if t % 4 == 0:
        a("s_waitcnt vmcnt(1)")
        lds_lane0(a, f"ds_add_u32 v{VLC}, v{VONE}")
    a(E[0])
    if t % 4 == 2: a(f"v_readfirstlane_b32 s70, v{VCNT}")
    mfma(a, O, Vprev + 4, P + 4)
    a(E[1])
    if t % 4 == 2:
        a("s_cmp_ge_u32 s70, s71")
        a(f"s_cbranch_scc1 a_ok{t}")
        a.label(f"a_spin{t}")
        a("s_sleep 1")
        a(f"ds_read_b32 v{VCNT}, v{VLC}")
        a("s_waitcnt lgkmcnt(0)")
        a(f"v_readfirstlane_b32 s70, v{VCNT}")
        a("s_nop 0")
        a("s_cmp_ge_u32 s70, s71")
        a(f"s_cbranch_scc0 a_spin{t}")
        a.label(f"a_ok{t}")
        a("s_add_u32 s71, s71, 8")
        a("s_add_u32 m0, s73, s74")
        a("s_add_u32 s72, s72, 8192")
        a(f"buffer_load_dwordx4 v1, s[{SKV}:{SKV+3}], s72 offen sc1 lds")
        a("s_add_u32 s74, s74, 8192")
        a("s_and_b32 s74, s74, 0x7fff")
    for i in range(2, 5): a(E[i])
    mfma(a, Sn, KB[(t + 1) & 1], Q, NM)
    tv = t + 1; tk = t + 2
    vreg = VVA if (tv < 4 or tv >= 8) else VVB
    kreg = VKA if (tk < 4 or tk >= 8) else VKB
    a(f"s_mov_b64 exec, s[{EXM}:{EXM+1}]")
    a(f"ds_read_b128 v[{Vn}:{Vn+3}], v{vreg} offset:{(tv%4)*2048}")
    a(f"ds_read_b128 v[{Vn+4}:{Vn+7}], v{vreg} offset:{(tv%4)*2048+512}")
    a("s_mov_b64 exec, -1")
    Kl = KB[t & 1]
    a(f"ds_read_b128 v[{Kl}:{Kl+3}], v{kreg} offset:{(tk%4)*2048}")
    if t % 4 == 1: a(f"ds_read_b32 v{VCNT}, v{VLC}")
    if t == 1: a(f"v_xor_b32 v{VKA}, 16384, v{VKA}")
    if t == 2: a(f"v_xor_b32 v{VVA}, 16384, v{VVA}")
    if t == 5: a(f"v_xor_b32 v{VKB}, 16384, v{VKB}")
    if t == 6: a(f"v_xor_b32 v{VVB}, 16384, v{VVB}")
    for i in range(5, 10): a(E[i])
    for i in range(0, 4): a(C[i])
    a(E[10]); a(E[11])
    mfma(a, O, Vc, P)
    for i in range(12, 16): a(E[i])
    for i in range(4, 8): a(C[i])

def lane_tr_nat(a, dst, tmp):
    a(f"v_bfe_u32 v{dst}, v0, 2, 2")
    a(f"v_lshl_add_u32 v{dst}, v3, 3, v{dst}")
    tr_tail(a, dst, tmp)
def lane_tr_perm(a, dst, tmp):
    a(f"v_bfe_u32 v{dst}, v0, 2, 2")
    a(f"v_lshl_add_u32 v{dst}, v3, 2, v{dst}")
    tr_tail(a, dst, tmp)
def tr_tail(a, dst, tmp):
    a(f"v_lshlrev_b32 v{dst}, 7, v{dst}")
    a(f"v_bfe_u32 v{tmp}, v0, 4, 1")
    a(f"v_lshlrev_b32 v{tmp}, 1, v{tmp}")
    a(f"v_bfe_u32 v{tmp+1}, v0, 1, 1")
    a(f"v_add_u32 v{tmp}, v{tmp}, v{tmp+1}")
    a(f"v_bfe_u32 v{tmp+1}, v0, 3, 1")
    a(f"v_lshlrev_b32 v{tmp+1}, 2, v{tmp+1}")
    a(f"v_xor_b32 v{tmp}, v{tmp}, v{tmp+1}")
    a(f"v_lshl_add_u32 v{dst}, v{tmp}, 4, v{dst}")
    a(f"v_and_b32 v{tmp}, 1, v0")
    a(f"v_lshl_add_u32 v{dst}, v{tmp}, 3, v{dst}")
def lane_dma128(a, dst, tmp):
    a(f"v_lshrrev_b32 v{dst}, 3, v0")
    a(f"v_bfe_u32 v{tmp}, v{dst}, 1, 1")
    a(f"v_lshlrev_b32 v{tmp}, 2, v{tmp}")
    a(f"v_and_b32 v{tmp+1}, 7, v0")
    a(f"v_xor_b32 v{tmp}, v{tmp}, v{tmp+1}")
    a(f"v_lshlrev_b32 v{tmp}, 4, v{tmp}")
    a(f"v_lshl_add_u32 v{dst}, v{dst}, 10, v{tmp}")

def dma_loop(a, tag, n, voff, srd_, s_glob, s_lds, gstep, lstep, sc1=False):
    for i in range(n):
        a(f"s_mov_b32 m0, s{s_lds}")
        a(f"s_add_u32 s{s_lds}, s{s_lds}, {lstep}")
        a(f"buffer_load_dwordx4 v{voff}, s[{srd_}:{srd_+3}], s{s_glob} offen{' sc1' if sc1 else ''} lds")
        a(f"s_add_u32 s{s_glob}, s{s_glob}, {gstep}")

def gen_a(a):
    a("s_lshl_b32 s66, s7, 6")
    a("s_mul_i32 s67, s8, 6")
    a("s_add_u32 s66, s66, s67")
    a("s_lshl_b32 s66, s66, 10")
    a(f"s_mul_i32 s67, s8, {6*XPITCH}")
    a(f"s_add_u32 s67, s67, {XR}")
    dma_loop(a, "ax", 6, 1, SG0, 66, 67, 1024, XPITCH)
    a("s_lshl_b32 s66, s8, 15")
    a("s_lshl_b32 s68, s6, 7")
    a("s_add_u32 s66, s66, s68")
    a("s_lshl_b32 s67, s8, 12")
    dma_loop(a, "aq", 4, 4, SG1, 66, 67, 8192, 1024)
    a("s_and_b32 s9, s8, 1             ; rt")
    a("s_lshr_b32 s10, s8, 1")
    a(f"v_mul_u32_u24 v7, {XPITCH}, v2")
    a("v_lshl_add_u32 v7, v3, 4, v7    ; n*pitch + h*16")
    a(f"s_mul_i32 s66, s9, {32*XPITCH}")
    a("s_lshl_b32 s67, s10, 8")
    a("s_add_u32 s67, s67, s66")
    a(f"s_add_u32 s67, s67, {XR}")
    a("v_add_u32 v8, s67, v7")
    stamp(a, 1)
    a("s_waitcnt vmcnt(4) lgkmcnt(0)")
    a("s_add_u32 s15, s15, 1             ; nonce")
    a("s_barrier                        ; B1")
    stamp(a, 2)
    X = 16
    for s in range(8):
        a(f"ds_read_b128 v[{X+4*s}:{X+4*s+3}], v8 offset:{s*32}")
    a("v_mov_b32 v9, 0x3f803f80")
    for r in range(10, 14): a(f"v_mov_b32 v{r}, 0")
    for s in range(8):
        a(f"s_waitcnt lgkmcnt({7-s})")
        for q in range(4):
            r = X + 4 * s + q
            a(f"v_dot2_f32_bf16 v{10+(q&1)}, v{r}, v9, v{10+(q&1)}")
            a(f"v_dot2_f32_bf16 v{12+(q&1)}, v{r}, v{r}, v{12+(q&1)}")
    a("s_lshl_b32 s66, s9, 11")
    a("s_lshl_b32 s67, s10, 9")
    a("s_add_u32 s66, s66, s67")
    a(f"s_add_u32 s66, s66, {ST}")
    a("v_lshlrev_b32 v14, 3, v0")
    a("v_add_u32 v14, s66, v14")
    a("v_add_f32 v10, v10, v11")
    a("v_add_f32 v11, v12, v13")
    a("ds_write_b64 v14, v[10:11]")
    a("s_waitcnt lgkmcnt(0)")
    a("s_barrier                        ; B2")
    a("s_lshl_b32 s66, s9, 11")
    a(f"s_add_u32 s66, s66, {ST}")
    a("v_lshlrev_b32 v14, 3, v2")
    a("v_add_u32 v14, s66, v14")
    for q in range(8):
        a(f"ds_read_b64 v[{48+2*q}:{49+2*q}], v14 offset:{q*256}")
    a("s_waitcnt lgkmcnt(0)")
    for step in (8, 4, 2):
        for q in range(0, step, 2):
            a(f"v_add_f32 v{48+q}, v{48+q}, v{48+q+step}")
            a(f"v_add_f32 v{49+q}, v{49+q}, v{49+q+step}")
    a(f"v_mul_f32 v48, {hex(f2u(1/512))}, v48")
    a(f"v_mul_f32 v49, {hex(f2u(1/512))}, v49")
    a("v_fma_f32 v49, -v48, v48, v49")
    a("v_max_f32 v49, 0, v49")
    a(f"v_add_f32 v49, {hex(f2u(1e-5))}, v49")
    a("v_rsq_f32 v49, v49")
    a("s_nop 0")
    a("v_mul_f32 v48, v48, v49")
    a("v_sub_f32 v48, 0, v48")
    a("v_mov_b32 v15, 0xffff0000")
    for r in range(32):
        x = X + r
        t0, t1 = 50 + 2 * (r & 1), 51 + 2 * (r & 1)
        a(f"v_lshlrev_b32 v{t0}, 16, v{x}")
        a(f"v_and_b32 v{t1}, v15, v{x}")
        a(f"v_fma_f32 v{t0}, v{t0}, v49, v48")
        a(f"v_fma_f32 v{t1}, v{t1}, v49, v48")
        a(f"v_cvt_pk_bf16_f32 v{x}, v{t0}, v{t1}")
        if r % 4 == 3:
            s = r // 4
            a(f"ds_write_b128 v8, v[{X+4*s}:{X+4*s+3}] offset:{s*32}")
    a("s_lshr_b32 s11, s8, 2           ; ft")
    a("s_bfe_u32 s12, s8, 0x10001      ; kh")
    lane_tr_nat(a, 23, 20)
    a("s_lshl_b32 s66, s11, 6")
    a("v_xor_b32 v23, s66, v23")
    a("s_lshl_b32 s66, s12, 15")
    a(f"s_add_u32 s66, s66, {WQ}")
    a("v_add_u32 v23, s66, v23          ; A addr")
    a(f"s_mul_i32 s66, s9, {32*XPITCH}")
    a("s_lshl_b32 s67, s12, 9")
    a("s_add_u32 s66, s66, s67")
    a(f"s_add_u32 s66, s66, {XR}")
    a("v_add_u32 v24, s66, v7           ; B addr")
    stamp(a, 3)
    a("s_waitcnt vmcnt(0) lgkmcnt(0)")
    a("s_barrier                        ; B3")
    ACC = 64; AB = [80, 84, 88]; BB = [92, 96, 100]
    def ld(s):
        A = AB[s % 3]; B = BB[s % 3]
        a(f"ds_read_b64_tr_b16 v[{A}:{A+1}], v23 offset:{s*2048}")
        a(f"ds_read_b64_tr_b16 v[{A+2}:{A+3}], v23 offset:{s*2048+512}")
        a(f"ds_read_b128 v[{B}:{B+3}], v24 offset:{s*32}")
    ld(0); ld(1)
    for s in range(16):
        if s + 2 < 16:
            ld(s + 2); a("s_waitcnt lgkmcnt(6)")
        elif s + 1 < 16: a("s_waitcnt lgkmcnt(3)")
        else: a("s_waitcnt lgkmcnt(0)")
        mfma(a, ACC, AB[s % 3], BB[s % 3], "0" if s == 0 else None)
    a("s_barrier                        ; B4")
    a("s_lshl_b32 s66, s8, 11")
    a(f"s_add_u32 s66, s66, {QX}")
    a("v_add_u32 v14, s66, v1")
    a("s_xor_b32 s67, s8, 2")
    a("s_lshl_b32 s67, s67, 11")
    a(f"s_add_u32 s67, s67, {QX}")
    a("v_add_u32 v15, s67, v1")
    a("s_nop 6")
    a("s_cmp_eq_u32 s12, 0")
    a("s_cbranch_scc0 a_kh1")
    a(f"ds_write_b128 v14, v[{ACC+8}:{ACC+11}]")
    a(f"ds_write_b128 v14, v[{ACC+12}:{ACC+15}] offset:1024")
    for r in range(8): a(f"v_mov_b32 v{48+r}, v{ACC+r}")
    a("s_branch a_khj")
    a.label("a_kh1")
    a(f"ds_write_b128 v14, v[{ACC}:{ACC+3}]")
    a(f"ds_write_b128 v14, v[{ACC+4}:{ACC+7}] offset:1024")
    for r in range(8): a(f"v_mov_b32 v{48+r}, v{ACC+8+r}")
    a.label("a_khj")
    a("s_waitcnt lgkmcnt(0)")
    a("s_barrier                        ; B5")
    a("ds_read_b128 v[56:59], v15")
    a("ds_read_b128 v[60:63], v15 offset:1024")
    a(f"s_mov_b32 s66, {hex(f2u(QSCALE))}")
    a("s_waitcnt lgkmcnt(0)")
    a("s_barrier                        ; B6")
    for r in range(8): a(f"v_add_f32 v{48+r}, v{48+r}, v{56+r}")
    for r in range(8): a(f"v_mul_f32 v{48+r}, s66, v{48+r}")
    for r in range(4): a(f"v_cvt_pk_bf16_f32 v{Q+r}, v{48+2*r}, v{49+2*r}")
    stamp(a, 4)
    a(f"v_add_u32 v{VKA}, {KVR}, v1")
    a(f"v_add_u32 v{VKB}, {KVR+8192}, v1")
    a("v_and_b32 v15, 15, v0")
    a("v_lshlrev_b32 v15, 4, v15")
    a("v_lshl_add_u32 v15, v3, 8, v15")
    a(f"v_add_u32 v{VVA}, {KVR+1024}, v15")
    a(f"v_add_u32 v{VVB}, {KVR+1024+8192}, v15")
    a(f"v_mov_b32 v{VLC}, {LC}")
    a(f"v_mov_b32 v{VONE}, 1")
    a(f"s_mov_b32 s{EXM}, 0xffff")
    a(f"s_mov_b32 s{EXM+1}, 0xffff")
    a("v_and_b32 v15, 27, v0")
    a("v_cmp_eq_u32 vcc, 16, v15")
    a("v_mov_b32 v15, 0x3f803f80")
    for r in range(16): a(f"v_mov_b32 v{O+r}, 0")
    a("v_cndmask_b32 v15, 0, v15, vcc")
    for r in range(8): a(f"v_mov_b32 v{P+r}, 0")
    for r in range(16): a(f"v_mov_b32 v{VB[0]+r}, v15")
    a("s_cmp_eq_u32 s8, 0")
    a("s_cbranch_scc0 a_wlds")
    a("v_lshlrev_b32 v15, 2, v0")
    a("s_and_b32 s67, s2, 15")
    a("s_lshl_b32 s67, s67, 8")
    a(f"s_add_u32 s67, s67, {KVF_O}")
    poll_flags(a, "kv", 15, 16, 67, 64, sleep=2)
    lds_lane0(a, f"ds_write_b32 v{VLC}, v{VONE} offset:4")
    a("s_branch a_kvgo")
    a.label("a_wlds")
    a(f"ds_read_b32 v16, v{VLC} offset:4")
    a("s_waitcnt lgkmcnt(0)")
    a("v_readfirstlane_b32 s66, v16")
    a("s_nop 0")
    a("s_cmp_eq_u32 s66, 1")
    a("s_cbranch_scc1 a_kvgo")
    a("s_sleep 1")
    a("s_branch a_wlds")
    a.label("a_kvgo")
    stamp(a, 5)
    a("s_lshl_b32 s72, s8, 10")
    a(f"s_add_u32 s73, s72, {KVR}")
    for c in range(3):
        a(f"s_add_u32 m0, s73, {c*8192}")
        if c: a("s_add_u32 s72, s72, 8192")
        else: a("s_nop 0")
        a(f"buffer_load_dwordx4 v1, s[{SKV}:{SKV+3}], s72 offen sc1 lds")
    a("s_mov_b32 s74, 0x6000")
    a("s_waitcnt vmcnt(1)")
    lds_lane0(a, f"ds_add_u32 v{VLC}, v{VONE}")
    a.label("a_w0")
    a(f"ds_read_b32 v{VCNT}, v{VLC}")
    a("s_waitcnt lgkmcnt(0)")
    a(f"v_readfirstlane_b32 s70, v{VCNT}")
    a("s_nop 0")
    a("s_cmp_ge_u32 s70, 8")
    a("s_cbranch_scc0 a_w0")
    a("s_mov_b32 s71, 16")
    stamp(a, 6)
    a(f"ds_read_b128 v[{KB[0]}:{KB[0]+3}], v{VKA}")
    a(f"ds_read_b128 v[{KB[1]}:{KB[1]+3}], v{VKA} offset:2048")
    a(f"s_mov_b64 exec, s[{EXM}:{EXM+1}]")
    a(f"ds_read_b128 v[{VB[0]}:{VB[0]+3}], v{VVA}")
    a(f"ds_read_b128 v[{VB[0]+4}:{VB[0]+7}], v{VVA} offset:512")
    a("s_mov_b64 exec, -1")
    a("s_waitcnt lgkmcnt(2)")
    mfma(a, S[0], KB[0], Q, "0")
    mfma(a, S[1], KB[1], Q, "0")
    a("s_nop 7"); a("s_nop 3")
    a(f"v_max3_f32 v15, v{S[0]}, v{S[0]+1}, v{S[0]+2}")
    for i in range(3, 15, 2): a(f"v_max3_f32 v15, v15, v{S[0]+i}, v{S[0]+i+1}")
    a(f"v_max3_f32 v14, v{S[0]+15}, v{S[1]}, v{S[1]+1}")
    for i in range(2, 16, 2): a(f"v_max3_f32 v14, v14, v{S[1]+i}, v{S[1]+i+1}")
    a("v_max_f32 v15, v15, v14")
    a("v_mov_b32 v14, v15")
    a("s_nop 1")
    a("v_permlane32_swap_b32 v15, v14")
    a("s_nop 0")
    a("v_max_f32 v15, v15, v14")
    a(f"v_add_f32 v15, {hex(f2u(MOFF))}, v15")
    for r in range(16): a(f"v_sub_f32 v{NM+r}, 0, v15")
    a("s_nop 1")
    mfma(a, S[0], KB[0], Q, NM)
    a("s_mov_b32 s12, 8")
    a("s_nop 7"); a("s_nop 1")
    stamp(a, 7)
    a(".p2align 6")
    a.label("a_loop")
    for t in range(8): attn_unit(a, t)
    a("s_sub_u32 s12, s12, 1")
    a("s_cmp_lg_u32 s12, 0")
    a("s_cbranch_scc1 a_loop")
    stamp(a, 8)
    a("s_setprio 3")
    mfma(a, O, VB[1] + 4, P + 4)
    a("s_mov_b32 s13, 0")
    a.label("a_fin")
    a("s_waitcnt vmcnt(0) lgkmcnt(0)")
    a("s_nop 7"); a("s_nop 3")
    a(f"v_mul_f32 v15, 0, v{O}")
    for r in range(1, 9): a(f"v_fma_f32 v15, v{O+r}, 0, v15")
    a("v_cmp_u_f32 vcc, v15, v15")
    a("s_cmp_lg_u32 s13, 0")
    a("s_cbranch_scc1 a_norm")
    a("s_nop 1")
    a("s_cmp_lg_u64 vcc, 0")
    a("s_cbranch_scc1 a_fallback")
    a.label("a_norm")
    a(f"v_rcp_f32 v15, v{O+8}")
    a("s_lshl_b32 s66, s7, 1")
    a("s_add_u32 s66, s66, s9")
    a("s_lshl_b32 s66, s66, 5")
    a("s_lshl_b32 s67, s6, 2")
    a("s_add_u32 s66, s66, s67")
    a("s_add_u32 s66, s66, s10")
    a("s_lshl_b32 s66, s66, 10")
    a(f"s_add_u32 s66, s66, {OF_O}")
    for r in range(8): a(f"v_mul_f32 v{O+r}, v{O+r}, v15")
    for r in range(4): a(f"v_cvt_pk_bf16_f32 v{P+r}, v{O+2*r}, v{O+2*r+1}")
    a(f"buffer_store_dwordx4 v[{P}:{P+3}], v1, s[{SWS}:{SWS+3}], s66 offen sc0 sc1")
    a("s_waitcnt vmcnt(0)")
    a("s_mov_b64 exec, 1")
    a(f"ds_add_rtn_u32 v15, v{VLC}, v{VONE} offset:8")
    a("s_waitcnt lgkmcnt(0)")
    a("v_readfirstlane_b32 s66, v15")
    a("s_lshl_b32 s67, s7, 8")
    a("s_lshl_b32 s68, s6, 2")
    a("s_add_u32 s67, s67, s68")
    a(f"s_add_u32 s67, s67, {CN_O + 128}")
    a("s_cmp_eq_u32 s66, 7")
    a("s_cbranch_scc0 a_done")
    a("v_mov_b32 v15, 0")
    a("v_mov_b32 v14, s15")
    a(f"buffer_store_dword v14, v15, s[{SWS}:{SWS+3}], s67 offen sc0 sc1")
    a.label("a_done")
    stamp(a, 9); stamp_rt(a, 11)
    a("s_mov_b64 exec, -1")
    prof_flush2(a)
    a("s_endpgm")
    a.label("a_fallback")
    a("v_mov_b32 v15, 0xff800000")
    a("s_mov_b32 s66, 0")
    a.label("a_fb1")
    a(f"buffer_load_dwordx4 v[{KB[0]}:{KB[0]+3}], v1, s[{SKV}:{SKV+3}], s66 offen sc1")
    a("s_waitcnt vmcnt(0)")
    mfma(a, S[0], KB[0], Q, "0")
    a("s_nop 7"); a("s_nop 3")
    for i in range(0, 16, 2): a(f"v_max3_f32 v15, v15, v{S[0]+i}, v{S[0]+i+1}")
    a("s_add_u32 s66, s66, 2048")
    a("s_cmp_lt_u32 s66, 0x20000")
    a("s_cbranch_scc1 a_fb1")
    a("v_mov_b32 v14, v15")
    a("s_nop 1")
    a("v_permlane32_swap_b32 v15, v14")
    a("s_nop 0")
    a("v_max_f32 v15, v15, v14")
    for r in range(16): a(f"v_sub_f32 v{NM+r}, 0, v15")
    for r in range(16): a(f"v_mov_b32 v{O+r}, 0")
    a("v_and_b32 v14, 15, v0")
    a("v_lshlrev_b32 v14, 4, v14")
    a("v_lshl_add_u32 v14, v3, 8, v14")
    a("v_add_u32 v14, 1024, v14")
    a("s_mov_b32 s66, 0")
    a.label("a_fb2")
    a(f"buffer_load_dwordx4 v[{KB[0]}:{KB[0]+3}], v1, s[{SKV}:{SKV+3}], s66 offen sc1")
    a(f"s_mov_b64 exec, s[{EXM}:{EXM+1}]")
    a(f"buffer_load_dwordx4 v[{VB[0]}:{VB[0]+3}], v14, s[{SKV}:{SKV+3}], s66 offen sc1")
    a(f"buffer_load_dwordx4 v[{VB[0]+4}:{VB[0]+7}], v14, s[{SKV}:{SKV+3}], s66 offen offset:512 sc1")
    a("s_mov_b64 exec, -1")
    a("s_waitcnt vmcnt(0)")
    mfma(a, S[0], KB[0], Q, NM)
    a("s_nop 7"); a("s_nop 3")
    for i in range(16): a(f"v_exp_f32 v{S[0]+i}, v{S[0]+i}")
    a("s_nop 0")
    for i in range(8): a(f"v_cvt_pk_bf16_f32 v{P+i}, v{S[0]+2*i}, v{S[0]+2*i+1}")
    a("s_nop 1")
    mfma(a, O, VB[0], P)
    mfma(a, O, VB[0] + 4, P + 4)
    a("s_nop 7"); a("s_nop 3")
    a("s_add_u32 s66, s66, 2048")
    a("s_cmp_lt_u32 s66, 0x20000")
    a("s_cbranch_scc1 a_fb2")
    a("s_mov_b32 s13, 1")
    a("s_branch a_fin")

def prof_flush2(a):
    import common
    if not common.PROF: return
    a("s_lshl_b32 s78, s2, 4")
    a("s_add_u32 s78, s78, s8")
    a("s_lshl_b32 s78, s78, 6")
    a(f"s_add_u32 s78, s78, {PRF_O}")
    a("s_mov_b64 exec, 1")
    a("v_mov_b32 v160, 0")
    for i in range(14):
        a(f"v_mov_b32 v161, s{80+i}")
        a(f"buffer_store_dword v161, v160, s[{SWS}:{SWS+3}], s78 offen offset:{4*i}")
    a("s_mov_b64 exec, -1")

GACC = 16; GA = [112, 124]; GB = [136, 144]; GVO = [4, 5, 6]; GVA = 7; GVB = 8; STG = 6272
GLC = 9
def g_reads(a, rs, buf, s, kso):
    for u in range(3):
        A = GA[rs] + 4 * u
        o = buf * STG + s * 1536 + u * 32
        a(f"ds_read_b64_tr_b16 v[{A}:{A+1}], v{GVA} offset:{o}")
        a(f"ds_read_b64_tr_b16 v[{A+2}:{A+3}], v{GVA} offset:{o+384}")
    for rt in range(2):
        B = GB[rs] + 4 * rt
        a(f"ds_read_b128 v[{B}:{B+3}], v{GVB} offset:{rt*32*XPITCH + kso}")
def g_mfmas(a, rs):
    for u in range(3):
        for rt in range(2):
            mfma(a, GACC + (u * 2 + rt) * 16, GA[rs] + 4 * u, GB[rs] + 4 * rt)
def g_dma(a, buf):
    for m, srd_ in ((0, SG0), (1, SG1)):
        for i in range(3):
            a(f"s_add_u32 m0, s69, {buf*STG + m*3200 + i*1024}")
            a("s_nop 0")
            a(f"buffer_load_dwordx4 v{GVO[i]}, s[{srd_}:{srd_+3}], s68 offen lds")
    a(f"s_add_u32 s68, s68, {32*2752}")

DACC = 16; DBR = 80; DAF = [128, 136]; NS = 22; DEPTH = 6
def down_issue(a, s):
    slot = s % DEPTH
    for i in range(2):
        a(f"s_add_u32 m0, s69, {slot*2048 + i*1024}")
        a("s_nop 0")
        a(f"buffer_load_dwordx4 v4, s[{SG0}:{SG0+3}], s68 offen lds")
        a("s_add_u32 s68, s68, 8192")
    for rt in range(2):
        B = DBR + slot * 8 + rt * 4
        srd_ = (SG1, SG2)[rt]
        a(f"buffer_load_dwordx4 v[{B}:{B+3}], v1, s[{srd_}:{srd_+3}], s70 offen sc1")
    a("s_add_u32 s70, s70, 1024")
def a_reads(a, A0, v0reg, v1reg, off):
    for ct, vr_ in ((0, v0reg), (1, v1reg)):
        A = A0 + 4 * ct
        a(f"ds_read_b64_tr_b16 v[{A}:{A+1}], v{vr_} offset:{off}")
        a(f"ds_read_b64_tr_b16 v[{A+2}:{A+3}], v{vr_} offset:{off+1024}")

def sgpr_select4(a, dst, vals):
    a(f"s_mov_b32 s{dst}, {vals[0]}")
    for g in range(1, 4):
        a(f"s_cmp_eq_u32 s9, {g}")
        a(f"s_cselect_b32 s{dst}, {vals[g]}, s{dst}")

def gen_g(a):
    a("s_sub_u32 s9, s8, 8              ; g")
    a("s_lshl_b32 s66, s7, 6")
    a("s_lshl_b32 s67, s9, 2")
    a("s_add_u32 s66, s66, s67")
    a("s_add_u32 s66, s66, 48")
    a("s_lshl_b32 s66, s66, 10")
    a(f"s_mul_i32 s67, s9, {4*XPITCH}")
    a(f"s_add_u32 s67, s67, {XR + 48*XPITCH}")
    dma_loop(a, "gx", 4, 1, SG0, 66, 67, 1024, XPITCH)
    a("s_lshl_b32 s66, s9, 16")
    a("s_add_u32 s66, s66, 0x40000")
    a("s_lshl_b32 s68, s6, 7")
    a("s_add_u32 s66, s66, s68")
    a("s_lshl_b32 s67, s9, 13")
    a(f"s_add_u32 s67, s67, {WQ + 32*1024}")
    dma_loop(a, "gq", 8, 4, SG1, 66, 67, 8192, 1024)
    a("s_lshl_b32 s66, s9, 12")
    a(f"s_add_u32 s67, s66, {WKV}")
    a("s_mov_b32 m0, s67")
    a("s_cmp_ge_u32 s6, 2")
    a("s_cbranch_scc1 g_nokv")
    for i in range(4):
        a(f"buffer_load_dwordx4 v1, s[{SG2}:{SG2+3}], s66 offen offset:{i*1024} lds")
    a("s_waitcnt vmcnt(12)")
    a("s_branch g_kvj")
    a.label("g_nokv")
    a("s_waitcnt vmcnt(8)")
    a.label("g_kvj")
    a(f"v_mov_b32 v{GLC}, {LC}")
    a("s_cmp_eq_u32 s9, 0")
    a("s_cbranch_scc0 g_nz")
    a("v_mov_b32 v10, 0")
    a("v_mov_b32 v11, 0")
    a("v_mov_b32 v12, 0")
    a("v_mov_b32 v13, 0")
    lds_lane0(a, f"ds_write_b128 v{GLC}, v[10:13]")
    a("s_waitcnt lgkmcnt(0)")
    a.label("g_nz")
    a("s_waitcnt lgkmcnt(0)")
    a("s_add_u32 s15, s15, 1             ; nonce")
    stamp(a, 1)
    a("s_barrier                        ; B1")
    a("s_barrier                        ; B2")
    a("s_waitcnt vmcnt(0)")
    a("s_barrier                        ; B3")
    stamp(a, 2)
    a("s_cmp_ge_u32 s6, 2")
    a("s_cbranch_scc1 g_skipkv")
    a("s_and_b32 s10, s9, 1             ; rt")
    a("s_lshr_b32 s11, s9, 1            ; kh")
    a("v_bfe_u32 v20, v0, 2, 2")
    a("v_and_b32 v21, 3, v0")
    a("v_lshlrev_b32 v23, 8, v3")
    a("v_lshl_add_u32 v23, v20, 5, v23")
    a("v_lshl_add_u32 v23, v21, 3, v23")
    a("s_lshl_b32 s66, s11, 13")
    a(f"s_add_u32 s66, s66, {WKV}")
    a("v_add_u32 v23, s66, v23")
    a(f"v_mul_u32_u24 v7, {XPITCH}, v2")
    a("v_lshl_add_u32 v7, v3, 4, v7")
    a(f"s_mul_i32 s66, s10, {32*XPITCH}")
    a("s_lshl_b32 s67, s11, 9")
    a("s_add_u32 s66, s66, s67")
    a(f"s_add_u32 s66, s66, {XR}")
    a("v_add_u32 v24, s66, v7")
    ACC = 64
    def kvld(s):
        A = 80 + 8 * (s % 4)
        a(f"ds_read_b64_tr_b16 v[{A}:{A+1}], v23 offset:{s*512}")
        a(f"ds_read_b64_tr_b16 v[{A+2}:{A+3}], v23 offset:{s*512+128}")
        a(f"ds_read_b128 v[{A+4}:{A+7}], v24 offset:{s*32}")
    for chain in range(2):
        if chain == 0:
            a("s_cmp_eq_u32 s6, 1")
            a("s_cbranch_scc1 g_vchain")
        else:
            a.label("g_vchain")
        kvld(0); kvld(1); kvld(2)
        for s in range(16):
            if s + 3 < 16: kvld(s + 3); a("s_waitcnt lgkmcnt(9)")
            else: a(f"s_waitcnt lgkmcnt({3*(15-s)})")
            A = 80 + 8 * (s % 4)
            if chain == 0: mfma(a, ACC, A, A + 4, "0" if s == 0 else None)
            else: mfma(a, ACC, A + 4, A, "0" if s == 0 else None)
        if chain == 0: a("s_branch g_kvdone")
    a.label("g_kvdone")
    a("s_barrier                        ; B4")
    a("s_lshl_b32 s66, s9, 12")
    a(f"s_add_u32 s66, s66, {KRED - 4096}")
    a("v_add_u32 v14, s66, v1")
    a("s_nop 6")
    a("s_cmp_eq_u32 s9, 0")
    a("s_cbranch_scc1 g_kvw0")
    for q in range(4): a(f"ds_write_b128 v14, v[{ACC+4*q}:{ACC+4*q+3}] offset:{q*1024}")
    a("s_waitcnt lgkmcnt(0)")
    a("s_barrier                        ; B5")
    a("s_barrier                        ; B6")
    a("s_branch g_gateup")
    a.label("g_kvw0")
    a("s_barrier                        ; B5")
    a(f"v_add_u32 v14, {KRED}, v1")
    for g in range(3):
        for q in range(4):
            a(f"ds_read_b128 v[{80+16*g+4*q}:{83+16*g+4*q}], v14 offset:{g*4096+q*1024}")
    a("s_waitcnt lgkmcnt(0)")
    a("s_barrier                        ; B6")
    for r in range(16):
        a(f"v_add_f32 v{ACC+r}, v{ACC+r}, v{96+r}")
        a(f"v_add_f32 v{80+r}, v{80+r}, v{112+r}")
    for r in range(8):
        a(f"v_cvt_pk_bf16_f32 v{48+r}, v{ACC+2*r}, v{ACC+2*r+1}")
        a(f"v_cvt_pk_bf16_f32 v{56+r}, v{80+2*r}, v{81+2*r}")
    a("s_lshl_b32 s66, s7, 12            ; tile 2c * 2048")
    a("s_cmp_eq_u32 s6, 1")
    a("s_cbranch_scc1 g_vst")
    a(f"buffer_store_dwordx4 v[48:51], v1, s[{SKV}:{SKV+3}], s66 offen sc0 sc1")
    a(f"buffer_store_dwordx4 v[56:59], v1, s[{SKV}:{SKV+3}], s66 offen offset:2048 sc0 sc1")
    a("s_branch g_kvflag")
    a.label("g_vst")
    a("v_lshlrev_b32 v14, 8, v3")
    a("v_lshl_add_u32 v14, v2, 4, v14")
    a("v_mov_b32 v15, 0x40000000")
    a("v_cmp_gt_u32 vcc, 16, v2")
    a("s_add_u32 s66, s66, 1024")
    a("s_nop 1")
    a("v_cndmask_b32 v14, v15, v14, vcc")
    a(f"buffer_store_dwordx4 v[48:51], v14, s[{SKV}:{SKV+3}], s66 offen sc0 sc1")
    a(f"buffer_store_dwordx4 v[52:55], v14, s[{SKV}:{SKV+3}], s66 offen offset:512 sc0 sc1")
    a(f"buffer_store_dwordx4 v[56:59], v14, s[{SKV}:{SKV+3}], s66 offen offset:2048 sc0 sc1")
    a(f"buffer_store_dwordx4 v[60:63], v14, s[{SKV}:{SKV+3}], s66 offen offset:2560 sc0 sc1")
    a.label("g_kvflag")
    a("s_waitcnt vmcnt(0)")
    a("s_lshl_b32 s66, s7, 1")
    a("s_add_u32 s66, s66, s6")
    a("s_lshl_b32 s66, s66, 2")
    a(f"s_add_u32 s66, s66, {KVF_O}")
    a("v_lshlrev_b32 v14, 8, v0")
    a("v_mov_b32 v15, s15")
    a("s_mov_b64 exec, 0xffff")
    a(f"buffer_store_dword v15, v14, s[{SWS}:{SWS+3}], s66 offen sc0 sc1")
    a("s_mov_b64 exec, -1")
    a("s_branch g_gateup")
    a.label("g_skipkv")
    a("s_barrier                        ; B4")
    a("s_barrier                        ; B5")
    a("s_barrier                        ; B6")
    a.label("g_gateup")
    stamp(a, 3)
    srd(a, SG0, P_W1, 512 * 2752)
    srd(a, SG1, P_W3, 512 * 2752)
    a("s_lshl_b32 s10, s6, 2")
    a("s_add_u32 s10, s10, s9           ; gw")
    sgpr_select4(a, 69, GS)
    a("s_mov_b32 s14, 0")
    a("s_cmp_gt_u32 s10, 28")
    a("s_cbranch_scc1 g_after_h")
    for i in range(3):
        a(f"v_add_u32 v10, {64*i}, v0")
        a("v_mul_u32_u24 v11, 43691, v10")
        a("v_lshrrev_b32 v11, 18, v11")
        a("v_mul_u32_u24 v12, 6, v11")
        a("v_sub_u32 v12, v10, v12")
        a("v_mul_u32_u24 v11, 2752, v11")
        a(f"v_lshl_add_u32 v{GVO[i]}, v12, 4, v11")
    a("s_mul_i32 s68, s10, 96")
    g_dma(a, 0); g_dma(a, 1)
    a("v_bfe_u32 v10, v0, 2, 2")
    a("v_lshl_add_u32 v10, v3, 3, v10")
    a("v_mul_u32_u24 v10, 96, v10")
    a("v_and_b32 v11, 3, v0")
    a("v_lshl_add_u32 v10, v11, 3, v10")
    a("v_bfe_u32 v11, v0, 4, 1")
    a("v_mul_u32_u24 v11, 3200, v11")
    a("v_add_u32 v10, v10, v11")
    a(f"v_add_u32 v{GVA}, s69, v10")
    a(f"v_mul_u32_u24 v{GVB}, {XPITCH}, v2")
    a(f"v_lshl_add_u32 v{GVB}, v3, 4, v{GVB}")
    a(f"v_add_u32 v{GVB}, {XR}, v{GVB}")
    for r in range(96): a(f"v_mov_b32 v{GACC+r}, 0")
    a("s_waitcnt vmcnt(6)")
    g_reads(a, 0, 0, 0, 0)
    a("s_mov_b32 s12, 8")
    a.label("g_loop")
    for buf in range(2):
        kso = 64 * buf
        g_reads(a, 1, buf, 1, kso + 32)
        a("s_waitcnt lgkmcnt(8)")
        g_mfmas(a, 0)
        a("s_waitcnt vmcnt(0) lgkmcnt(0)")
        g_dma(a, buf)
        g_reads(a, 0, 1 - buf, 0, kso + 64)
        g_mfmas(a, 1)
    a(f"v_add_u32 v{GVB}, 128, v{GVB}")
    a("s_sub_u32 s12, s12, 1")
    a("s_cmp_lg_u32 s12, 0")
    a("s_cbranch_scc1 g_loop")
    stamp(a, 4)
    a("s_setprio 3")
    a("s_waitcnt vmcnt(0) lgkmcnt(0)")
    a("s_nop 7"); a("s_nop 3")
    a(f"s_mov_b32 s66, {hex(f2u(-1.4426950408889634))}")
    a("s_mov_b32 s67, s66")
    a("s_mov_b32 s72, 1.0")
    a("s_mov_b32 s73, 1.0")
    a(f"s_mul_i32 s70, s7, {2*NF}")
    a("s_mul_i32 s71, s10, 3")
    a("s_add_u32 s70, s70, s71")
    a("s_lshl_b32 s70, s70, 10")
    a(f"s_add_u32 s70, s70, {HF_O}")
    T = 112
    for u in range(3):
        if u == 2:
            a("s_cmp_eq_u32 s10, 28")
            a("s_cbranch_scc1 g_hdone")
        for rt in range(2):
            A = GACC + (u * 2 + rt) * 16
            for i in range(0, 8, 2): a(f"v_pk_mul_f32 v[{T+i}:{T+i+1}], v[{A+i}:{A+i+1}], s[66:67]")
            for i in range(8): a(f"v_exp_f32 v{T+i}, v{T+i}")
            for i in range(0, 8, 2): a(f"v_pk_mul_f32 v[{A+i}:{A+i+1}], v[{A+i}:{A+i+1}], v[{A+8+i}:{A+9+i}]")
            for i in range(0, 8, 2): a(f"v_pk_add_f32 v[{T+i}:{T+i+1}], v[{T+i}:{T+i+1}], s[72:73]")
            for i in range(8): a(f"v_rcp_f32 v{T+i}, v{T+i}")
            a("s_nop 0")
            for i in range(0, 8, 2): a(f"v_pk_mul_f32 v[{A+i}:{A+i+1}], v[{A+i}:{A+i+1}], v[{T+i}:{T+i+1}]")
            D = 120 + 4 * ((u * 2 + rt) & 1)
            for i in range(4): a(f"v_cvt_pk_bf16_f32 v{D+i}, v{A+2*i}, v{A+2*i+1}")
            a(f"s_add_u32 s71, s70, {(rt*NF + u)*1024}")
            a(f"buffer_store_dwordx4 v[{D}:{D+3}], v1, s[{SWS}:{SWS+3}], s71 offen sc0 sc1")
    a.label("g_hdone")
    a("s_setprio 0")
    a("s_lshl_b32 s70, s7, 8")
    a("s_lshl_b32 s71, s10, 2")
    a("s_add_u32 s70, s70, s71")
    a(f"s_add_u32 s70, s70, {CN_O}")
    a("v_mov_b32 v10, 0")
    a("v_mov_b32 v11, s15")
    a("s_waitcnt vmcnt(0)")
    lds_lane0(a, f"buffer_store_dword v11, v10, s[{SWS}:{SWS+3}], s70 offen sc0 sc1")
    a.label("g_after_h")
    a("v_mov_b32 v160, 0")
    a("s_cmp_eq_u32 s9, 3")
    a("s_cbranch_scc0 g_noep")
    a("v_mov_b32 v10, 0")
    a("v_mov_b32 v160, 1")
    lds_lane0(a, f"buffer_atomic_add v160, v10, s[{SDBG}:{SDBG+3}], 0 offen sc0 sc1")
    a.label("g_noep")
    stamp(a, 5)
    gsync(a, "x", GLC, 10, 14)
    srd(a, SG0, P_WO, 512 * 1024)
    lane_dma128(a, 4, 10)
    lane_tr_perm(a, 7, 10)
    a("s_lshl_b32 s66, s9, 17")
    a("s_lshl_b32 s67, s6, 7")
    a("s_add_u32 s66, s66, s67")
    a("s_lshl_b32 s67, s9, 14")
    a(f"s_add_u32 s67, s67, {WO}")
    dma_loop(a, "wo", 16, 4, SG0, 66, 67, 8192, 1024)
    srd(a, SG0, P_W2, 1376 * 1024)
    a(f"s_mul_i32 s66, s7, {2*NF*1024}")
    a(f"s_add_u32 s66, s66, {HF_O}")
    a(f"s_add_u32 s{SG1}, s{P_WS}, s66")
    a(f"s_addc_u32 s{SG1+1}, s{P_WS+1}, 0")
    a(f"s_mov_b32 s{SG1+2}, {NF*1024}")
    a(f"s_mov_b32 s{SG1+3}, 0x20000")
    a(f"s_add_u32 s{SG2}, s{SG1}, {NF*1024}")
    a(f"s_addc_u32 s{SG2+1}, s{SG1+1}, 0")
    a(f"s_mov_b32 s{SG2+2}, {NF*1024}")
    a(f"s_mov_b32 s{SG2+3}, 0x20000")
    a(f"s_mul_i32 s68, s9, {NS*16*1024}")
    a("s_lshl_b32 s66, s6, 7")
    a("s_add_u32 s68, s68, s66           ; W2 soffset")
    a("v_add_u32 v5, s69, v7")
    a("v_xor_b32 v6, 64, v5")
    a("s_lshl_b32 s70, s7, 8")
    a(f"s_add_u32 s70, s70, {CN_O}")
    a("v_lshlrev_b32 v10, 2, v0")
    poll_flags(a, "h", 10, 11, 70, 29, sleep=8)
    a("v_readfirstlane_b32 s66, v160")
    a("s_nop 0")
    a("s_cmp_eq_u32 s66, 255")
    a("s_cbranch_scc0 g_noep2")
    a("v_mov_b32 v10, 0")
    a("v_mov_b32 v11, s15")
    a(f"s_mov_b32 s66, {EP_O}")
    lds_lane0(a, f"buffer_store_dword v11, v10, s[{SWS}:{SWS+3}], s66 offen sc0 sc1")
    a.label("g_noep2")
    a(f"s_mul_i32 s70, s9, {NS*1024}     ; h soffset")
    stamp(a, 6)
    for s in range(DEPTH): down_issue(a, s)
    a(f"s_waitcnt vmcnt({4*(DEPTH-1)})")
    a_reads(a, DAF[0], 5, 6, 0)
    for s in range(NS):
        if s + 1 < NS:
            issued = min(NS, s + DEPTH)
            a(f"s_waitcnt vmcnt({4*(issued-(s+2))})")
            a_reads(a, DAF[(s + 1) % 2], 5, 6, ((s + 1) % DEPTH) * 2048)
            a("s_waitcnt lgkmcnt(4)")
        else:
            a("s_waitcnt lgkmcnt(0)")
        slot = s % DEPTH
        for ct in range(2):
            for rt in range(2):
                mfma(a, DACC + (ct * 2 + rt) * 16, DAF[s % 2] + 4 * ct, DBR + slot * 8 + rt * 4, "0" if s == 0 else None)
        if s + DEPTH < NS: down_issue(a, s + DEPTH)
    stamp(a, 7)
    a("s_setprio 3")
    gsync(a, "r0", GLC, 10, 14)
    for ct in range(2):
        for rt in range(2):
            owner = 2 * rt + ct
            T = DACC + (ct * 2 + rt) * 16
            a(f"s_cmp_eq_u32 s9, {owner}")
            a(f"s_cbranch_scc1 g_skipw{owner}")
            a(f"s_sub_u32 s66, s9, {owner+1}")
            a("s_and_b32 s66, s66, 3")
            a("s_lshl_b32 s66, s66, 12")
            a(f"s_add_u32 s66, s66, {RED[owner]}")
            a("v_add_u32 v10, s66, v1")
            for q in range(4): a(f"ds_write_b128 v10, v[{T+4*q}:{T+4*q+3}] offset:{q*1024}")
            a.label(f"g_skipw{owner}")
    for owner in range(4):
        ct, rt = owner & 1, owner >> 1
        T = DACC + (ct * 2 + rt) * 16
        a(f"s_cmp_eq_u32 s9, {owner}")
        a(f"s_cbranch_scc0 g_nmv{owner}")
        for r in range(16): a(f"v_mov_b32 v{152+r}, v{T+r}")
        a.label(f"g_nmv{owner}")
    gsync(a, "r1", GLC, 10, 14)
    sgpr_select4(a, 68, RED)
    a("v_add_u32 v10, s68, v1")
    for p in range(3):
        for q in range(4):
            a(f"ds_read_b128 v[{16+16*p+4*q}:{19+16*p+4*q}], v10 offset:{p*4096+q*1024}")
    a("s_waitcnt lgkmcnt(0)")
    for r in range(16):
        a(f"v_add_f32 v{152+r}, v{152+r}, v{16+r}")
        a(f"v_add_f32 v{32+r}, v{32+r}, v{48+r}")
    for r in range(16): a(f"v_add_f32 v{152+r}, v{152+r}, v{32+r}")
    a(f"s_mov_b32 s66, {hex(f2u(-1.4426950408889634))}")
    a("s_mov_b32 s67, s66")
    a("s_mov_b32 s72, 1.0")
    a("s_mov_b32 s73, 1.0")
    for i in range(0, 16, 2): a(f"v_pk_mul_f32 v[{16+i}:{17+i}], v[{152+i}:{153+i}], s[66:67]")
    for i in range(16): a(f"v_exp_f32 v{16+i}, v{16+i}")
    a("s_nop 0")
    for i in range(0, 16, 2): a(f"v_pk_add_f32 v[{16+i}:{17+i}], v[{16+i}:{17+i}], s[72:73]")
    for i in range(16): a(f"v_rcp_f32 v{16+i}, v{16+i}")
    a("s_nop 0")
    for i in range(0, 16, 2): a(f"v_pk_mul_f32 v[{152+i}:{153+i}], v[{152+i}:{153+i}], v[{16+i}:{17+i}]")
    a("s_setprio 0")
    srd(a, SG0, P_X, 2048 * 1024)
    srd(a, SG1, P_OUT, 2048 * 1024)
    a("s_lshr_b32 s10, s9, 1            ; rt")
    a("s_and_b32 s11, s9, 1")
    a("v_lshlrev_b32 v8, 10, v2")
    a("v_lshl_add_u32 v8, v3, 3, v8")
    a("s_lshl_b32 s74, s7, 6")
    a("s_lshl_b32 s66, s10, 5")
    a("s_add_u32 s74, s74, s66")
    a("s_lshl_b32 s74, s74, 10")
    a("s_lshl_b32 s66, s6, 7")
    a("s_add_u32 s74, s74, s66")
    a("s_lshl_b32 s66, s11, 6")
    a("s_add_u32 s74, s74, s66")
    for q in range(4):
        a(f"buffer_load_dwordx2 v[{144+2*q}:{145+2*q}], v8, s[{SG0}:{SG0+3}], s74 offen offset:{q*16}")
    a("s_lshl_b32 s66, s11, 15")
    a(f"s_add_u32 s66, s66, {WO}")
    a("v_add_u32 v5, s66, v7")
    a("v_xor_b32 v6, 64, v5")
    gsync(a, "r2", GLC, 10, 14)
    stamp(a, 8)
    a("s_lshl_b32 s70, s7, 8")
    a(f"s_add_u32 s70, s70, {CN_O + 128}")
    a("v_lshlrev_b32 v10, 2, v0")
    poll_flags(a, "o", 10, 11, 70, 8, sleep=2)
    stamp(a, 9)
    a("s_lshl_b32 s66, s7, 1")
    a("s_add_u32 s66, s66, s10")
    a("s_lshl_b32 s66, s66, 5")
    a("s_lshl_b32 s67, s11, 4")
    a("s_add_u32 s66, s66, s67")
    a("s_lshl_b32 s66, s66, 10")
    a(f"s_add_u32 s66, s66, {OF_O}")
    for i in range(16):
        a(f"buffer_load_dwordx4 v[{80+4*i}:{83+4*i}], v1, s[{SWS}:{SWS+3}], s66 offen offset:{(i%4)*1024} sc1")
        if i % 4 == 3: a("s_add_u32 s66, s66, 4096")
    OA = [16, 32]; AF = [48, 56]
    a_reads(a, AF[0], 5, 6, 0)
    for i in range(16):
        if i + 1 < 16:
            a_reads(a, AF[(i + 1) % 2], 5, 6, (i + 1) * 2048)
            a(f"s_waitcnt vmcnt({15-i}) lgkmcnt(4)")
        else: a("s_waitcnt vmcnt(0) lgkmcnt(0)")
        for ct in range(2):
            mfma(a, OA[ct], AF[i % 2] + 4 * ct, 80 + 4 * i, "0" if i == 0 else None)
    sgpr_select4(a, 68, EX)
    a("v_add_u32 v9, s68, v1")
    a("s_xor_b32 s9, s9, 1")
    sgpr_select4(a, 69, EX)
    a("s_xor_b32 s9, s9, 1")
    a("v_add_u32 v10, s69, v1")
    a("s_cmp_eq_u32 s11, 0")
    a("s_cbranch_scc0 g_ex1")
    for q in range(4): a(f"ds_write_b128 v9, v[{OA[1]+4*q}:{OA[1]+4*q+3}] offset:{q*1024}")
    a("s_branch g_exj")
    a.label("g_ex1")
    for q in range(4): a(f"ds_write_b128 v9, v[{OA[0]+4*q}:{OA[0]+4*q+3}] offset:{q*1024}")
    for r in range(16): a(f"v_mov_b32 v{OA[0]+r}, v{OA[1]+r}")
    a.label("g_exj")
    a("s_waitcnt lgkmcnt(0)")
    a("s_barrier")
    for q in range(4): a(f"ds_read_b128 v[{32+4*q}:{35+4*q}], v10 offset:{q*1024}")
    a("v_mov_b32 v11, 0xffff0000")
    a("s_waitcnt lgkmcnt(0)")
    for r in range(16): a(f"v_add_f32 v{16+r}, v{16+r}, v{32+r}")
    for q in range(4):
        for i in range(2):
            x = 144 + 2 * q + i
            r = 4 * q + 2 * i
            a(f"v_lshlrev_b32 v48, 16, v{x}")
            a(f"v_and_b32 v49, v11, v{x}")
            a(f"v_fma_f32 v48, v{16+r}, v{152+r}, v48")
            a(f"v_fma_f32 v49, v{16+r+1}, v{152+r+1}, v49")
            a(f"v_cvt_pk_bf16_f32 v{x}, v48, v49")
        a(f"buffer_store_dwordx2 v[{144+2*q}:{145+2*q}], v8, s[{SG1}:{SG1+3}], s74 offen offset:{q*16}")
    stamp(a, 10); stamp_rt(a, 11)
    prof_flush2(a)
    if os.environ.get("DBGT"):
        a("s_memtime s[90:91]")
        a("s_memrealtime s[92:93]")
        a("s_waitcnt lgkmcnt(0)")
        a("s_sub_u32 s90, s90, s94")
        a("s_sub_u32 s92, s92, s96")
        a("s_cmp_eq_u32 s8, 8")
        a("s_cbranch_scc0 dbg_skip")
        a("s_and_b32 s66, s2, 63")
        a("s_cmp_eq_u32 s66, 0")
        a("s_cbranch_scc0 dbg_skip")
        a("s_lshr_b32 s66, s2, 6")
        a("s_lshl_b32 s66, s66, 3")
        a("s_add_u32 s66, s66, 16")
        a("v_mov_b32 v10, 0")
        a("v_mov_b32 v12, s90")
        a("v_mov_b32 v13, s92")
        lds_lane0(a, f"buffer_store_dwordx2 v[12:13], v10, s[{SDBG}:{SDBG+3}], s66 offen")
        a.label("dbg_skip")
    a("s_endpgm")

def gen_fused(a):
    name = NAME
    a(".p2align 8")
    a(f".type {name},@function")
    a.label(name)
    a("s_cmp_ge_u32 s2, 256")
    a("s_cbranch_scc1 k_exit")
    a("s_load_dwordx16 s[16:31], s[0:1], 0")
    a("s_load_dwordx8 s[32:39], s[0:1], 64")
    if os.environ.get("DBGT"):
        a("s_memtime s[94:95]")
        a("s_memrealtime s[96:97]")
    stamp_rt(a, 12)
    a("s_and_b32 s4, s2, 7")
    a("s_lshr_b32 s5, s2, 3")
    a("s_and_b32 s5, s5, 3")
    a("s_lshr_b32 s6, s2, 5          ; member j")
    a("s_lshl_b32 s7, s4, 2")
    a("s_add_u32 s7, s7, s5          ; cluster c")
    a("v_lshrrev_b32 v1, 6, v0")
    a("v_and_b32 v0, 63, v0          ; lane")
    a("v_readfirstlane_b32 s8, v1")
    a("v_lshlrev_b32 v1, 4, v0       ; lane*16")
    a("v_and_b32 v2, 31, v0            ; n")
    a("v_lshrrev_b32 v3, 5, v0         ; h")
    if os.environ.get("CODEPF", "1") == "1":
        a("s_cmp_ge_u32 s8, 8")
        a("s_cbranch_scc0 k_nopf")
        a("s_getpc_b64 s[66:67]")
        a.label("k_pcref")
        a("s_sub_u32 s68, s8, 8")
        a("s_lshl_b32 s68, s68, 13")
        a("v_lshlrev_b32 v10, 7, v0")
        a("v_add_u32 v10, s68, v10")
        a("v_mov_b32 v13, s67")
        a("v_add_co_u32 v12, vcc, s66, v10")
        a("s_mov_b32 s68, k_end - k_pcref")
        a("s_nop 0")
        a("v_addc_co_u32 v13, vcc, 0, v13, vcc")
        a("v_cmp_gt_u32 vcc, s68, v10")
        a("s_nop 0")
        a("s_and_saveexec_b64 s[70:71], vcc")
        a("s_cbranch_execz k_pfj")
        a("global_load_dword v14, v[12:13], off")
        a.label("k_pfj")
        a("s_mov_b64 exec, -1")
        a.label("k_nopf")
    lane_dma128(a, 4, 10)
    a("s_waitcnt lgkmcnt(0)")
    a(f"s_load_dword s15, s[{P_WS}:{P_WS+1}], {hex(EP_O)}")
    stamp(a, 0); stamp_rt(a, 10)
    srd(a, SG0, P_X, 2048 * 1024)
    srd(a, SG1, P_WQ, 512 * 1024)
    srd(a, SWS, P_WS, WS_SZ)
    a(f"s_add_u32 s{SKV}, s{P_WS}, {KV_O}")
    a(f"s_addc_u32 s{SKV+1}, s{P_WS+1}, 0")
    a(f"s_mov_b32 s{SKV+2}, 0x20000")
    a(f"s_mov_b32 s{SKV+3}, 0x20000")
    srd(a, SDBG, P_DBG, 256)
    a("s_cmp_eq_u32 s6, 1")
    a(f"s_cselect_b32 s{SG2}, s{P_WV}, s{P_WK}")
    a(f"s_cselect_b32 s{SG2+1}, s{P_WV+1}, s{P_WK+1}")
    a(f"s_mov_b32 s{SG2+2}, 16384")
    a(f"s_mov_b32 s{SG2+3}, 0x20000")
    a("s_cmp_ge_u32 s8, 8")
    a("s_cbranch_scc1 k_g")
    gen_a(a)
    a.label("k_g")
    gen_g(a)
    a.label("k_exit")
    a("s_endpgm")
    a.label("k_end")
    return name, 168, LDS_SIZE, 768
```
